```python
import torch

def _softmax(x, axis=-1):
    return torch.softmax(x, dim=axis)
def _gelu(x):
    return torch.nn.functional.gelu(x, approximate="tanh")
def _silu(x):
    return torch.nn.functional.silu(x)
def _sigmoid(x):
    return torch.sigmoid(x)
def _layernorm(x, axis=-1, eps=1e-5):
    m = x.mean(dim=axis, keepdim=True)
    v = x.var(dim=axis, keepdim=True, unbiased=False)
    return (x - m) / torch.sqrt(v + eps)
def _scatter_add(tgt, idx, src, axis=0):
    return tgt.clone().index_add_(axis, idx, src)
def _segment_sum(src, seg, n):
    out = torch.zeros((n,) + src.shape[1:], dtype=src.dtype)
    return out.index_add_(0, seg, src)
def _pad(x, pw):
    flat = tuple(v for pair in reversed(pw) for v in pair)
    return torch.nn.functional.pad(x, flat)

kernel_name = 'gated_mix__sliding_block_cached__gqa_block_cached__decode'

def setup_inputs():

    _w = (lambda a: (lambda t: t.to(torch.bfloat16) if t.is_floating_point() else t)(torch.as_tensor(a)))
    def _A_setup():
        B, Sq, D = 4, 1, 512
        Hq, Hkv, Sk, Dh = 32, 8, 8192, 128
        assert Hq % Hkv == 0, (Hq, Hkv)
        return {
            "x": _w((lambda *s: torch.randn(*s, dtype=torch.bfloat16) * 0.05)(B, Sq, D)),
            "k_cache": _w((lambda *s: torch.randn(*s, dtype=torch.bfloat16) * 6.4)(B, Hkv, Sk, Dh)),
            "v_cache": _w((lambda *s: torch.randn(*s, dtype=torch.bfloat16) * 0.05)(B, Hkv, Sk, Dh)),
            "wq": _w((lambda *s: torch.randn(*s, dtype=torch.bfloat16) * 6.4)(D, Hq * Dh) * (D ** -0.5)),
            "wo": _w((lambda *s: torch.randn(*s, dtype=torch.bfloat16) * 0.05)(Hq * Dh, D) * ((Hq * Dh) ** -0.5)),
        }
    _A_in = _A_setup()

    def _B_setup():
        B, Sq, D = 4, 1, 512
        Hq, Hkv, Sk, Dh = 32, 8, 8192, 128
        assert Hq % Hkv == 0, (Hq, Hkv)
        return {
            "x": _w((lambda *s: torch.randn(*s, dtype=torch.bfloat16) * 0.05)(B, Sq, D)),
            "k_cache": _w((lambda *s: torch.randn(*s, dtype=torch.bfloat16) * 6.4)(B, Hkv, Sk, Dh)),
            "v_cache": _w((lambda *s: torch.randn(*s, dtype=torch.bfloat16) * 0.05)(B, Hkv, Sk, Dh)),
            "wq": _w((lambda *s: torch.randn(*s, dtype=torch.bfloat16) * 6.4)(D, Hq * Dh) * (D ** -0.5)),
            "wo": _w((lambda *s: torch.randn(*s, dtype=torch.bfloat16) * 0.05)(Hq * Dh, D) * ((Hq * Dh) ** -0.5)),
        }
    _B_in = _B_setup()

    return {
        "A_x": _A_in["x"],
        "A_k_cache": _A_in["k_cache"],
        "A_v_cache": _A_in["v_cache"],
        "A_wq": _A_in["wq"],
        "A_wo": _A_in["wo"],
        "B_x": _B_in["x"],
        "B_k_cache": _B_in["k_cache"],
        "B_v_cache": _B_in["v_cache"],
        "B_wq": _B_in["wq"],
        "B_wo": _B_in["wo"],
        "gate_w": _w((lambda *s: torch.randn(*s, dtype=torch.bfloat16) * 0.05)(512) * 16.0),
    }

def reference(A_x, A_k_cache, A_v_cache, A_wq, A_wo, B_x, B_k_cache, B_v_cache, B_wq, B_wo, gate_w):
    def _A_ref(x, k_cache, v_cache, wq, wo):
        B, Sq, D = x.shape
        Hq, Dh = 32, 128
        Hkv, Sk = k_cache.shape[1], k_cache.shape[2]
        W = min(4096, max(256, Sk // 4))
        rep = Hq // Hkv
        q = (lambda x, *d: x.permute(*d))((x @ wq).reshape(B, Sq, Hq, Dh), 0, 2, 1, 3)
        k = (lambda x, n, axis: torch.repeat_interleave(x, n, dim=axis))(k_cache[:, :, Sk - W:, :], rep, axis=1)
        v = (lambda x, n, axis: torch.repeat_interleave(x, n, dim=axis))(v_cache[:, :, Sk - W:, :], rep, axis=1)
        scores = torch.einsum("bhqd,bhkd->bhqk", q, k) * (Dh ** -0.5)
        p = _softmax(scores, axis=-1)
        o = torch.einsum("bhqk,bhkd->bhqd", p, v)
        return (lambda x, *d: x.permute(*d))(o, 0, 2, 1, 3).reshape(B, Sq, Hq * Dh) @ wo

    def _B_ref(x, k_cache, v_cache, wq, wo):
        B, Sq, D = x.shape
        Hq, Dh = 32, 128
        Hkv = k_cache.shape[1]
        rep = Hq // Hkv
        q = (lambda x, *d: x.permute(*d))((x @ wq).reshape(B, Sq, Hq, Dh), 0, 2, 1, 3)
        k = (lambda x, n, axis: torch.repeat_interleave(x, n, dim=axis))(k_cache, rep, axis=1)
        v = (lambda x, n, axis: torch.repeat_interleave(x, n, dim=axis))(v_cache, rep, axis=1)
        scores = torch.einsum("bhqd,bhkd->bhqk", q, k) * (Dh ** -0.5)
        p = _softmax(scores, axis=-1)
        o = torch.einsum("bhqk,bhkd->bhqd", p, v)
        return (lambda x, *d: x.permute(*d))(o, 0, 2, 1, 3).reshape(B, Sq, Hq * Dh) @ wo

    x = A_x
    g = _sigmoid((x * gate_w).sum(-1, keepdims=True))
    a = _A_ref(x, A_k_cache, A_v_cache, A_wq, A_wo)
    b = _B_ref(x, B_k_cache, B_v_cache, B_wq, B_wo)
    return g * a + (1 - g) * b
```

```python
NAME = "gated_mix__sliding_block_cached__gqa_block_cached__decode"

HEADER_KARG = """; Kernarg layout (112 bytes, pointers only, base s[0:1]):
"""

class Asm:
    def __init__(self):
        self.lines = []
    def __call__(self, s=""):
        for l in s.split("\n"):
            self.lines.append(l)
    def text(self):
        return "\n".join(self.lines) + "\n"

def kernel_begin(a, label):
    a(".globl %s" % label)
    a(".p2align 8")
    a(".type %s,@function" % label)
    a("%s:" % label)

def kernel_desc(a, label, vgpr, sgpr=102, accum=None):
    if accum is None:
        accum = (vgpr + 3) // 4 * 4
        accum = min(accum, 256)
    a(".amdhsa_kernel %s" % label)
    a("  .amdhsa_next_free_vgpr %d" % vgpr)
    a("  .amdhsa_next_free_sgpr %d" % sgpr)
    a("  .amdhsa_accum_offset %d" % accum)
    a("  .amdhsa_group_segment_fixed_size 0")
    a("  .amdhsa_kernarg_size 112")
    a("  .amdhsa_user_sgpr_count 2")
    a("  .amdhsa_user_sgpr_kernarg_segment_ptr 1")
    a("  .amdhsa_system_sgpr_workgroup_id_x 1")
    a(".end_amdhsa_kernel")
```

```python
import re

TRANS = ("v_exp_f32", "v_log_f32", "v_rcp_f32", "v_rsq_f32", "v_sqrt_f32", "v_sin_f32", "v_cos_f32", "v_rcp_iflag_f32")
MFMA_PASSES = {
    "v_mfma_f32_16x16x32_bf16": (4, "xdl"), "v_mfma_f32_16x16x16_bf16": (4, "xdl"),
    "v_mfma_f32_32x32x16_bf16": (8, "xdl"), "v_mfma_f32_16x16x4_f32": (8, "sgemm"),
}

def split_ops(s):
    out, depth, cur = [], 0, ""
    for ch in s:
        if ch == "[": depth += 1
        if ch == "]": depth -= 1
        if ch == "," and depth == 0:
            out.append(cur.strip()); cur = ""
        else:
            cur += ch
    if cur.strip(): out.append(cur.strip())
    return out

def regs_of(tok):
    tok = tok.strip()
    neg = tok.lstrip("-")
    m = re.match(r"^abs\((.*)\)$", neg)
    if m: neg = m.group(1)
    neg = neg.strip("|")
    m = re.match(r"^([vas])\[(\d+):(\d+)\]$", neg)
    if m:
        return {(m.group(1), i) for i in range(int(m.group(2)), int(m.group(3)) + 1)}
    m = re.match(r"^([vas])(\d+)$", neg)
    if m:
        return {(m.group(1), int(m.group(2)))}
    if neg in ("vcc", "vcc_lo", "vcc_hi"): return {("s", "vcc")}
    if neg in ("exec", "exec_lo", "exec_hi"): return {("s", "exec")}
    if neg == "m0": return {("s", "m0")}
    return set()

class Ins:
    def __init__(self, text):
        self.text = text
        t = text.split(";")[0].split("//")[0].strip()
        self.label = None
        self.op = None
        self.w = set(); self.r = set()
        self.kind = "none"
        self.states = 0
        if not t or t.startswith("."):
            return
        if t.endswith(":"):
            self.label = t[:-1]; return
        parts = t.split(None, 1)
        op = parts[0]; rest = parts[1] if len(parts) > 1 else ""
        self.op = op
        self.states = 1
        ops = split_ops(rest)
        if ops:
            last = ops[-1].split()
            mods = last[1:]
            ops[-1] = last[0] if last else ""
            self.mods = " ".join(mods)
        else:
            self.mods = ""
        self.ops = ops
        base = re.sub(r"_(e32|e64|dpp|sdwa)$", "", op)
        self.base = base
        R = [regs_of(o) for o in ops]
        self.dpp = op.endswith("_dpp") or "row_" in self.mods or "quad_perm" in rest
        if op == "s_nop":
            self.kind = "nop"; self.states = int(ops[0], 0) + 1
        elif base in MFMA_PASSES:
            self.kind = "mfma"; self.passes, self.mclass = MFMA_PASSES[base]
            self.w = set(R[0]); self.A = R[1]; self.B = R[2]; self.C = R[3]
            self.r = R[1] | R[2] | R[3]
        elif op.startswith("v_mfma"):
            raise ValueError("unknown mfma " + op)
        elif op.startswith("v_"):
            self.kind = "valu"
            self.trans = base in TRANS
            self.w = set(R[0]); self.r = set().union(*R[1:]) if len(R) > 1 else set()
            if base.startswith("v_permlane") and "swap" in base:
                self.w = R[0] | R[1]; self.r = R[0] | R[1]
            if base in ("v_fmac_f32", "v_mac_f32", "v_dot2c_f32_bf16", "v_writelane_b32"):
                self.r |= R[0]
            if self.dpp:
                self.r |= R[0]
            if base in ("v_add_co_u32", "v_addc_co_u32", "v_sub_co_u32"):
                self.w |= R[1]
                self.r = set().union(*R[2:])
            if base.startswith("v_cmpx"):
                raise ValueError("v_cmpx not modelled")
            self.lanesel = set()
            if base in ("v_readlane_b32", "v_writelane_b32") and len(R) > 2:
                self.lanesel = R[2]
        elif op.startswith("buffer_") or op.startswith("global_"):
            self.kind = "vmem"
            self.wide_store = False
            if op.startswith("buffer_load"):
                self.w = set(R[0]); self.r = set().union(*R[1:])
            elif op.startswith("buffer_store"):
                self.r = set().union(*R); self.data = R[0]
                self.wide_store = op.endswith("x3") or op.endswith("x4")
            elif op.startswith("buffer_atomic"):
                self.r = set().union(*R)
                if "sc0" in self.mods: self.w = set(R[0])
            elif op.startswith("global_load"):
                self.w = set(R[0]); self.r = set().union(*R[1:])
            elif op.startswith("global_store"):
                self.r = set().union(*R); self.data = R[1]
                self.wide_store = op.endswith("x3") or op.endswith("x4")
            elif op.startswith("global_atomic"):
                if "sc0" in self.mods:
                    self.w = set(R[0]); self.r = set().union(*R[1:])
                else:
                    self.r = set().union(*R)
            else:
                raise ValueError("unknown vmem " + op)
        elif op.startswith("ds_"):
            self.kind = "ds"
            if op.startswith("ds_read") or op.startswith("ds_bpermute") or op.startswith("ds_swizzle") or op.startswith("ds_permute"):
                self.w = set(R[0]); self.r = set().union(*R[1:])
            elif "_rtn" in op:
                self.w = set(R[0]); self.r = set().union(*R[1:])
            else:
                self.r = set().union(*R)
        elif op.startswith("s_"):
            self.kind = "salu"
            if base in ("s_branch",) or base.startswith("s_cbranch"):
                self.kind = "branch"; self.target = ops[0]
            elif base in ("s_waitcnt", "s_barrier", "s_endpgm", "s_setprio", "s_sleep") or base.startswith("s_cmp") or base.startswith("s_bitcmp"):
                self.r = set().union(*R) if R else set()
            else:
                self.w = set(R[0]) if R else set()
                self.r = set().union(*R[1:]) if len(R) > 1 else set()
                if "saveexec" in base:
                    self.w |= {("s", "exec")}
        else:
            raise ValueError("cannot parse: " + text)

def isv(regs):
    return {r for r in regs if r[0] in "va"}
def iss(regs):
    return {r for r in regs if r[0] == "s"}

XDL_D = {2: 5, 4: 8, 8: 12, 16: 20}
XDL_C_OVERLAP = {2: 4, 4: 6, 8: 10, 16: 18}
XDL_WAR_C = {2: 1, 4: 3, 8: 7, 16: 15}
SG_D = {2: 4, 4: 6, 8: 10, 16: 18}

def need(p, c):
    n = 0
    if p.kind == "valu":
        pw_v = isv(p.w); pw_s = iss(p.w)
        if c.kind == "mfma" and pw_v & c.r: n = max(n, 2)
        if c.kind == "valu":
            if c.dpp and pw_v & isv(c.r): n = max(n, 2)
            if c.base in ("v_readlane_b32", "v_readfirstlane_b32") and pw_v & isv(c.r): n = max(n, 1)
            if c.base.startswith("v_permlane") and pw_v & isv(c.r): n = max(n, 2)
            if pw_s & iss(c.r): n = max(n, 2)
            if pw_s & c.lanesel: n = max(n, 4)
            if p.trans and pw_v & isv(c.r): n = max(n, 1)
        if c.kind in ("vmem", "ds"):
            if pw_s & iss(c.r): n = max(n, 5)
            if p.trans and pw_v & isv(c.r): n = max(n, 1)
        if c.kind in ("salu", "branch"):
            if pw_s & (iss(c.r)): n = max(n, 1)
            if c.kind == "branch" and "vcc" in c.base and ("s", "vcc") in pw_s: n = max(n, 1)
    if p.kind == "mfma":
        D = p.w
        tabD = XDL_D if p.mclass == "xdl" else SG_D
        if c.kind == "valu" and D & (isv(c.r) | isv(c.w)): n = max(n, tabD[p.passes])
        if c.kind in ("vmem", "ds") and D & (isv(c.r) | isv(c.w)): n = max(n, tabD[p.passes])
        if c.kind == "mfma":
            if D & (c.A | c.B): n = max(n, tabD[p.passes])
            if D & c.C:
                if c.C == D and c.base == p.base: pass
                else: n = max(n, XDL_C_OVERLAP[p.passes])
            elif D & c.w:
                n = max(n, XDL_C_OVERLAP[p.passes])
        if c.kind == "valu" and p.mclass == "xdl" and isv(p.C) & isv(c.w): n = max(n, XDL_WAR_C[p.passes])
    if p.kind == "vmem" and getattr(p, "wide_store", False):
        if c.kind == "valu" and p.data & isv(c.w): n = max(n, 2)
        elif c.kind in ("vmem", "ds", "mfma") and p.data & isv(c.w): n = max(n, 1)
    return n

MAXW = 20

def analyse(lines):
    ins = [Ins(l) for l in lines]
    labels = {x.label: i for i, x in enumerate(ins) if x.label}
    preds = [[] for _ in ins]
    for i, x in enumerate(ins):
        if i + 1 < len(ins):
            stop = x.op in ("s_branch", "s_endpgm")
            if not stop: preds[i + 1].append(i)
        if x.kind == "branch":
            if x.target not in labels: raise ValueError("unknown label " + x.target)
            preds[labels[x.target]].append(i)
    fixes = {}
    for i, c in enumerate(ins):
        if c.kind not in ("valu", "mfma", "vmem", "ds", "salu", "branch"): continue
        worst = 0
        stack = [(p, 0) for p in preds[i]]
        seen = {}
        while stack:
            j, dist = stack.pop()
            if seen.get(j, 99) <= dist: continue
            seen[j] = dist
            p = ins[j]
            if p.op:
                n = need(p, c)
                if n > dist: worst = max(worst, n - dist)
            nd = dist + p.states
            if nd < MAXW:
                for q in preds[j]: stack.append((q, nd))
        if worst: fixes[i] = worst
    return ins, fixes

def fix(lines, verbose=False):
    lines = list(lines)
    total = 0
    for _ in range(200):
        ins, fixes = analyse(lines)
        if not fixes: break
        i = min(fixes)
        n = fixes[i]
        if verbose: print("; nop %d before: %s" % (n, lines[i].strip()))
        lines.insert(i, "s_nop %d" % (n - 1))
        total += n
    else:
        for _ in range(100000):
            ins, fixes = analyse(lines)
            if not fixes: break
            for i in sorted(fixes, reverse=True)[:1]:
                lines.insert(i, "s_nop %d" % (fixes[i] - 1)); total += fixes[i]
    return lines, total

def fix_all(lines, verbose=False):
    lines = list(lines); total = 0
    while True:
        ins, fixes = analyse(lines)
        if not fixes: return lines, total
        idx = sorted(fixes)
        last = -100; chosen = []
        for i in idx:
            if i - last > 24:
                chosen.append(i); last = i
        for i in reversed(chosen):
            if verbose: print("; nop %d before: %s" % (fixes[i], lines[i].strip()))
            lines.insert(i, "s_nop %d" % (fixes[i] - 1)); total += fixes[i]
```

```python
import argparse, struct
from asmlib import *
import hazard

def f32(x):
    return "0x%08x" % struct.unpack("<I", struct.pack("<f", x))[0]

WS_EPOCH = 0x0
WS_CNT   = 0x1000
WS_Q     = 0x10000
WS_MB1   = 0x100000
WS_MB3   = 0x400000
WS_STAMP = 0x1000000
EPOCH_C  = 0x9E3779B1
L_QP = 0
L_QB = 8192
L_OP = 10240
HS = 528
L_ML = L_OP + 2 * 4 * 4 * HS
L_PB = L_ML + 256
L_FR = L_PB + 256
LDS_BYTES = L_FR + 128

S_W = 3
S_L2E, S_SCALE, S_HI16, S_TAGM = 4, 5, 6, 7
KA, VA, KB, VB, WQ, WO, XS, WS, OUT, GW = 8, 12, 16, 20, 24, 28, 32, 36, 40, 44
S_C, S_PAIR, S_B, S_HKV, S_SLOT, S_BR, S_CB, S_T = 48, 49, 50, 51, 52, 53, 54, 55
S_SO, S_PB, S_KO, S_LAST, S_NEXT, S_SPIN, S_SELL, S_SELH = 56, 57, 58, 59, 60, 61, 62, 63
S_WSP = 90
S_T0, S_T1, S_T2, S_T3 = 92, 93, 94, 95
S_ROLE, S_G, S_OMG = 96, 97, 98
S_STAMP = 64
V_TID, V_LANE, V_OFFK, V_OFFL, V_ONE, V_CNT, V_TK = 0, 1, 2, 3, 4, 5, 6
V_M, V_ML, V_L, V_S, V_P = 7, 8, 9, 10, 11
V_PR = 12
V_POP = 16
V_QA, V_QB = 20, 24
V_TE = 28
V_ACC = 32
V_W = 64
V_AV = 96
V_WO = 160
V_BV = 192
V_D = 208
V_PERM = 224
V_X = 240
A_AK = 0
A_BK = 64
NAGPR = 80

SPIN_MAX = 20000

class G:
    def __init__(self, stamps=False, ntf="nt", dyn=True, nstat=2):
        self.a = Asm()
        self.stamps = stamps
        self.nt = ntf
        self.dyn = dyn
        self.nstat = nstat
        self.nstamp = 0
        self.uid = 0

    def __call__(self, s):
        self.a(s)

    def label(self, p):
        self.uid += 1
        return "%s_%d" % (p, self.uid)

    def stamp(self, k):
        if self.stamps:
            r = stamp_reg(k)
            self("s_memrealtime s[%d:%d]" % (r, r + 1))

    def srd(self, dst, src, nbytes):
        self("s_mov_b32 s%d, s%d" % (dst, src))
        self("s_and_b32 s%d, s%d, 0xffff" % (dst + 1, src + 1))
        self("s_mov_b32 s%d, 0x%x" % (dst + 2, nbytes))
        self("s_mov_b32 s%d, 0x20000" % (dst + 3))

    def bload(self, dst, voff, srd, soff, imm=0, flags="", n=4, agpr=False):
        r = "%s[%d:%d]" % ("a" if agpr else "v", dst, dst + n - 1) if n > 1 else "%s%d" % ("a" if agpr else "v", dst)
        op = {1: "dword", 2: "dwordx2", 4: "dwordx4"}[n]
        so = "s%d" % soff if soff is not None else "0"
        self("buffer_load_%s %s, v%d, s[%d:%d], %s offen offset:%d %s" % (op, r, voff, srd, srd + 3, so, imm, flags))

    def bstore(self, src, voff, srd, soff, imm=0, flags="", n=4):
        r = "v[%d:%d]" % (src, src + n - 1) if n > 1 else "v%d" % src
        op = {1: "dword", 2: "dwordx2", 4: "dwordx4"}[n]
        so = "s%d" % soff if soff is not None else "0"
        self("buffer_store_%s %s, v%d, s[%d:%d], %s offen offset:%d %s" % (op, r, voff, srd, srd + 3, so, imm, flags))

    def exec_set(self, mask):
        if mask == -1:
            self("s_mov_b64 exec, -1")
        else:
            self("s_mov_b32 exec_lo, 0x%x" % (mask & 0xffffffff))
            self("s_mov_b32 exec_hi, 0x%x" % (mask >> 32))

    def round_bf16(self, dst, src):
        self("v_cvt_pk_bf16_f32 v%d, v%d, v%d" % (dst, src, src))
        self("v_and_b32 v%d, s%d, v%d" % (dst, S_HI16, dst))

    def perm_operand(self, dst, src_regs, i):
        r, half = i >> 1, i & 1
        sel = S_SELH if half else S_SELL
        for t in range(len(src_regs) // 2):
            self("v_perm_b32 v%d, v%d, v%d, s%d" % (dst + t, src_regs[2 * t + 1] + r, src_regs[2 * t] + r, sel))

    def qk_group(self, kregs, qop, dbase, out):
        for j in range(4):
            self("v_mfma_f32_16x16x32_bf16 v[%d:%d], a[%d:%d], v[%d:%d], 0" % (dbase + 4 * j, dbase + 4 * j + 3, kregs[j], kregs[j] + 3, qop, qop + 3))

    def qk_extract(self, dbase, out):
        for j in range(4):
            for r in range(4):
                n = (4 * (j - r)) % 16
                ctl = "quad_perm:[0,1,2,3]" if n == 0 else "row_ror:%d" % n
                self("v_mov_b32_dpp v%d, v%d %s row_mask:0xf bank_mask:0x%x" % (V_PR + r, dbase + 4 * j + r, ctl, 1 << j))
        self("v_add_f32 v%d, v%d, v%d" % (V_PR, V_PR, V_PR + 1))
        self("v_add_f32 v%d, v%d, v%d" % (V_PR + 2, V_PR + 2, V_PR + 3))
        self("v_add_f32 v%d, v%d, v%d" % (out, V_PR, V_PR + 2))
        self.round_bf16(out, out)
        self("v_mul_f32 v%d, s%d, v%d" % (out, S_SCALE, out))
        self.round_bf16(out, out)

    def head_allreduce(self, reg, op, tmp):
        self("%s_dpp v%d, v%d, v%d row_ror:4 row_mask:0xf bank_mask:0xf" % (op, reg, reg, reg))
        self("%s_dpp v%d, v%d, v%d row_ror:8 row_mask:0xf bank_mask:0xf" % (op, reg, reg, reg))
        self("v_mov_b32 v%d, v%d" % (tmp, reg))
        self("v_permlane16_swap_b32 v%d, v%d" % (reg, tmp))
        self("%s v%d, v%d, v%d" % (op, reg, reg, tmp))
        self("v_mov_b32 v%d, v%d" % (tmp, reg))
        self("v_permlane32_swap_b32 v%d, v%d" % (reg, tmp))
        self("%s v%d, v%d, v%d" % (op, reg, reg, tmp))

    def p_operand(self, p, dst):
        for e in (1, 2, 3):
            self("v_mov_b32_dpp v%d, v%d row_shl:%d row_mask:0xf bank_mask:0xf bound_ctrl:0" % (V_TE + e, p, 4 * e))
        self("v_cvt_pk_bf16_f32 v%d, v%d, v%d" % (dst, p, V_TE + 1))
        self("v_cvt_pk_bf16_f32 v%d, v%d, v%d" % (dst + 1, V_TE + 2, V_TE + 3))

    def write_partial(self, br):
        self.head_allreduce(V_L, "v_add_f32", V_X)
        self("v_and_b32 v%d, 3, v%d" % (V_X, V_LANE))
        self("v_mul_u32_u24 v%d, %d, v%d" % (V_X, HS, V_X))
        self("v_lshrrev_b32 v%d, 4, v%d" % (V_X + 1, V_LANE))
        self("v_lshl_add_u32 v%d, v%d, 4, v%d" % (V_X, V_X + 1, V_X))
        self("s_mul_i32 s%d, s%d, %d" % (S_T0, S_W, 4 * HS))
        self("s_add_u32 s%d, s%d, %d" % (S_T0, S_T0, L_OP + br * 16 * HS))
        self("v_add_u32 v%d, s%d, v%d" % (V_X, S_T0, V_X))
        self("v_lshlrev_b32 v%d, 5, v%d" % (V_X + 1, V_LANE))
        self("s_lshl_b32 s%d, s%d, 2" % (S_T0, S_W))
        self("s_add_u32 s%d, s%d, %d" % (S_T0, S_T0, L_ML + br * 128))
        self("v_add_u32 v%d, s%d, v%d" % (V_X + 1, S_T0, V_X + 1))
        self.exec_set(0x000F000F000F000F)
        for i in range(8):
            self("ds_write_b128 v%d, v[%d:%d] offset:%d" % (V_X, V_ACC + 4 * i, V_ACC + 4 * i + 3, i * 64))
        self.exec_set(0xF)
        self("ds_write_b32 v%d, v%d" % (V_X + 1, V_M))
        self("ds_write_b32 v%d, v%d offset:16" % (V_X + 1, V_L))
        self.exec_set(-1)

    def tagcheck(self, regs, mask_sgpr_or_lit, acc, tmp):
        self("v_xor_b32 v%d, s%d, v%d" % (acc, S_T, regs[0]))
        rest = regs[1:]
        k = 0
        while k < len(rest):
            if k + 1 < len(rest):
                self("v_xor_b32 v%d, s%d, v%d" % (tmp, S_T, rest[k]))
                self("v_xor_b32 v%d, s%d, v%d" % (tmp + 1, S_T, rest[k + 1]))
                self("v_or3_b32 v%d, v%d, v%d, v%d" % (acc, acc, tmp, tmp + 1))
                k += 2
            else:
                self("v_xor_b32 v%d, s%d, v%d" % (tmp, S_T, rest[k]))
                self("v_or_b32 v%d, v%d, v%d" % (acc, acc, tmp))
                k += 1
        self("v_and_b32 v%d, %s, v%d" % (acc, mask_sgpr_or_lit, acc))
        self("v_cmp_ne_u32 vcc, 0, v%d" % acc)

    def poll(self, loads, regs, mask):
        L = self.label("L_poll"); Ld = self.label("L_polled")
        self("s_mov_b32 s%d, 0" % S_SPIN)
        self("%s:" % L)
        loads()
        self("s_add_u32 s%d, s%d, 1" % (S_SPIN, S_SPIN))
        self("s_waitcnt vmcnt(0)")
        self.tagcheck(regs, mask, V_X + 12, V_X + 13)
        self("s_cbranch_vccz %s" % Ld)
        self("s_cmp_lt_u32 s%d, %d" % (S_SPIN, SPIN_MAX))
        self("s_cbranch_scc1 %s" % L)
        self("%s:" % Ld)

    def build(self):
        g = self
        nt = self.nt
        K = NAME + "_kernel"
        g(HEADER_KARG.rstrip())
        g("; @launch grid=(256,1,1) block=(256,1,1) lds=%d" % LDS_BYTES)
        g('.amdgcn_target "amdgcn-amd-amdhsa--gfx950"')
        g(".text")
        kernel_begin(g.a, K)
        self.body_start = len(g.a.lines)
        g("s_cmp_ge_u32 s2, 256")
        g("s_cbranch_scc1 L_end")
        g.stamp(0)
        g("s_load_dwordx16 s[64:79], s[0:1], 0")
        g("s_load_dwordx8 s[80:87], s[0:1], 64")
        g("s_load_dwordx4 s[88:91], s[0:1], 96")
        g("v_and_b32 v%d, 63, v0" % V_LANE)
        g("v_lshrrev_b32 v%d, 6, v0" % V_X)
        g("v_readfirstlane_b32 s%d, v%d" % (S_W, V_X))
        g("s_and_b32 s%d, s2, 7" % S_C)
        g("s_lshr_b32 s%d, s2, 3" % S_T0)
        g("s_lshl_b32 s%d, s%d, 2" % (S_T1, S_C))
        g("s_add_u32 s%d, s%d, s%d" % (S_T0, S_T0, S_T1))
        g("s_and_b32 s%d, s%d, 31" % (S_PAIR, S_T0))
        g("s_lshr_b32 s%d, s%d, 3" % (S_B, S_PAIR))
        g("s_and_b32 s%d, s%d, 7" % (S_HKV, S_PAIR))
        g("s_lshl_b32 s%d, s%d, 2" % (S_SLOT, S_C))
        g("s_add_u32 s%d, s%d, s%d" % (S_SLOT, S_SLOT, S_W))
        g("s_lshl_b32 s%d, s%d, 21" % (S_PB, S_PAIR))
        g("s_lshr_b32 s%d, s2, 7" % S_BR)
        g("s_and_b32 s%d, s2, 0x70" % S_CB)
        g("s_and_b32 s%d, s2, 7" % S_T0)
        g("s_lshl_b32 s%d, s%d, 1" % (S_T0, S_T0))
        g("s_or_b32 s%d, s%d, s%d" % (S_CB, S_CB, S_T0))
        g("s_bfe_u32 s%d, s2, 0x10003" % S_T0)
        g("s_or_b32 s%d, s%d, s%d" % (S_CB, S_CB, S_T0))
        g("s_lshl_b32 s%d, s%d, 7" % (S_ROLE, S_BR))
        g("s_or_b32 s%d, s%d, s%d" % (S_ROLE, S_ROLE, S_CB))
        g("s_mov_b32 s%d, %s" % (S_L2E, f32(1.4426950408889634)))
        g("s_mov_b32 s%d, %s" % (S_SCALE, f32(128 ** -0.5)))
        g("s_mov_b32 s%d, 0xffff0000" % S_HI16)
        g("s_mov_b32 s%d, 0x3ff" % S_TAGM)
        g("s_mov_b32 s%d, 0x05040100" % S_SELL)
        g("s_mov_b32 s%d, 0x07060302" % S_SELH)
        X = V_X
        g("v_lshlrev_b32 v%d, 4, v%d" % (V_OFFL, V_LANE))
        g("v_lshrrev_b32 v%d, 4, v%d" % (X + 1, V_LANE))
        g("v_bfe_u32 v%d, v%d, 2, 2" % (X + 2, V_LANE))
        g("v_and_b32 v%d, 3, v%d" % (X + 3, V_LANE))
        g("v_lshlrev_b32 v%d, 6, v%d" % (V_OFFK, X + 1))
        g("v_lshl_add_u32 v%d, v%d, 8, v%d" % (V_OFFK, X + 2, V_OFFK))
        g("v_lshl_add_u32 v%d, v%d, 4, v%d" % (V_OFFK, X + 3, V_OFFK))
        g("v_lshlrev_b32 v%d, 18, v%d" % (X + 4, X + 1))
        g("v_lshl_add_u32 v%d, v%d, 16, v%d" % (X + 4, X + 2, X + 4))
        g("v_lshl_add_u32 v%d, v%d, 4, v%d" % (X + 4, X + 3, X + 4))
        g("v_lshlrev_b32 v%d, 10, v%d" % (X + 5, X + 3))
        g("v_lshl_add_u32 v%d, v%d, 6, v%d" % (X + 5, X + 1, X + 5))
        g("v_lshl_add_u32 v%d, v%d, 4, v%d" % (X + 5, X + 2, X + 5))
        g("v_and_b32 v%d, 15, v%d" % (X + 6, V_LANE))
        g("v_lshlrev_b32 v%d, 4, v%d" % (X + 6, X + 6))
        g("v_lshl_add_u32 v%d, v%d, 11, v%d" % (X + 6, X + 1, X + 6))
        g("v_mov_b32 v%d, 1" % V_ONE)
        g("s_waitcnt lgkmcnt(0)")
        g("s_load_dword s%d, s[90:91], 0" % S_T)
        g("s_cmp_eq_u32 s%d, 0" % S_BR)
        g("s_cselect_b32 s%d, s70, s80" % S_T0)
        g("s_cselect_b32 s%d, s71, s81" % S_T1)
        g("s_cselect_b32 s%d, s72, s82" % S_T2)
        g("s_cselect_b32 s%d, s73, s83" % S_T3)
        g.srd(WQ, S_T0, 0x400000)
        g.srd(XS, 64, 4096)
        g.srd(WS, 90, 285221888)
        g.srd(KA, 66, 0x4000000)
        g("s_and_b32 s%d, s%d, 0x8f" % (S_SO, S_ROLE))
        g("s_cmp_eq_u32 s%d, 0x80" % S_SO)
        g("s_cselect_b32 s%d, 1, 0" % S_SO)
        g("s_cmp_eq_u32 s%d, 0" % S_W)
        g("s_cselect_b32 s%d, s%d, 0" % (S_SO, S_SO))
        g("s_cmp_eq_u32 s%d, 0" % S_SO)
        g("s_cbranch_scc1 L_noinit")
        g("s_lshr_b32 s%d, s%d, 4" % (S_SO, S_CB))
        g("s_lshl_b32 s%d, s%d, 8" % (S_SO, S_SO))
        g("s_add_u32 s%d, s%d, %d" % (S_SO, S_SO, WS_CNT))
        g("v_lshlrev_b32 v%d, 11, v%d" % (X + 7, V_LANE))
        g("v_mov_b32 v%d, %d" % (X + 8, 32 * self.nstat))
        g.exec_set(0xF)
        g.bstore(X + 8, X + 7, WS, S_SO, 0, "sc1", n=1)
        g.exec_set(-1)
        g("L_noinit:")
        g("s_lshl_b32 s%d, s%d, 20" % (S_SO, S_W))
        g("s_lshl_b32 s%d, s%d, 6" % (S_KO, S_CB))
        g("s_add_u32 s%d, s%d, s%d" % (S_SO, S_SO, S_KO))
        for e in range(8):
            g.bload(V_W + 4 * e, X + 4, WQ, S_SO, 0, nt)
            if e < 7:
                g("s_add_u32 s%d, s%d, 8192" % (S_SO, S_SO))
        g("s_lshl_b32 s%d, s%d, 8" % (S_SO, S_W))
        g.bload(V_POP, X + 5, XS, S_SO, 0, "")
        g("s_lshl_b32 s%d, s%d, 14" % (S_KO, S_SLOT))
        g("s_add_u32 s%d, s%d, s%d" % (S_KO, S_KO, S_PB))
        g("s_add_u32 s%d, s%d, %d" % (S_KO, S_KO, 6144 * 256))
        for j in range(16):
            if j % 4 == 0:
                g("s_add_u32 s%d, s%d, %d" % (S_SO, S_KO, (j // 4) * 4096))
            g.bload(A_AK + 4 * j, V_OFFK, KA, S_SO, (j % 4) * 1024, nt, agpr=True)
        g.srd(VA, 68, 0x4000000)
        g.srd(KB, 76, 0x4000000)
        g.srd(VB, 78, 0x4000000)
        g.srd(WO, S_T2, 0x400000)
        g.srd(GW, 84, 1024)
        g.srd(OUT, 86, 4096)
        g.stamp(1)

        def late_loads():
            for j in range(16):
                if j % 4 == 0:
                    g("s_add_u32 s%d, s%d, %d" % (S_SO, S_KO, (j // 4) * 4096))
                g.bload(V_AV + 4 * j, V_OFFL, VA, S_SO, (j % 4) * 1024, nt)
            g("s_lshl_b32 s%d, s%d, 15" % (S_T0, S_CB))
            g("s_lshl_b32 s%d, s%d, 8" % (S_T1, S_W))
            g("s_add_u32 s%d, s%d, s%d" % (S_T0, S_T0, S_T1))
            for e in range(8):
                g("s_add_u32 s%d, s%d, %d" % (S_SO, S_T0, (8 * (e & 3) + (e >> 2)) * 1024))
                g.bload(V_WO + 4 * e, V_X + 6, WO, S_SO, 0, nt)
            g("s_lshl_b32 s%d, s%d, 12" % (S_KO, S_SLOT))
            g("s_add_u32 s%d, s%d, s%d" % (S_KO, S_KO, S_PB))
            for j in range(4):
                g.bload(A_BK + 4 * j, V_OFFK, KB, S_KO, j * 1024, nt, agpr=True)
            for j in range(4):
                g.bload(V_BV + 4 * j, V_OFFL, VB, S_KO, j * 1024, nt)

        g("s_cmp_eq_u32 s%d, 0" % S_W)
        g("s_cbranch_scc1 L_w0_pre")
        late_loads()
        g("s_waitcnt vmcnt(48)")
        g("s_branch L_qproj")
        g("L_w0_pre:")
        g("s_lshr_b32 s%d, s2, 6" % S_SO)
        g("s_lshl_b32 s%d, s%d, 10" % (S_SO, S_SO))
        g.bload(X + 8, V_OFFL, XS, S_SO, 0, "")
        g.bload(X + 12, V_OFFL, GW, None, 0, "")
        g("s_waitcnt vmcnt(18)")
        g("L_qproj:")
        wregs = [V_W + 4 * e for e in range(8)]
        for i in range(8):
            pb = V_PERM + 4 * (i % 4)
            g.perm_operand(pb, wregs, i)
            if i > 0:
                pp = V_PERM + 4 * ((i - 1) % 4)
                g("v_mfma_f32_16x16x32_bf16 v[%d:%d], v[%d:%d], v[%d:%d], 0" % (V_ACC + 4 * (i - 1), V_ACC + 4 * (i - 1) + 3, pp, pp + 3, V_POP, V_POP + 3))
        pp = V_PERM + 4 * (7 % 4)
        g("v_mfma_f32_16x16x32_bf16 v[%d:%d], v[%d:%d], v[%d:%d], 0" % (V_ACC + 28, V_ACC + 31, pp, pp + 3, V_POP, V_POP + 3))
        g("v_lshrrev_b32 v%d, 4, v%d" % (V_TE, V_LANE))
        g("v_lshlrev_b32 v%d, 9, v%d" % (V_TE, V_TE))
        g("v_and_b32 v%d, 3, v%d" % (V_TE + 1, V_LANE))
        g("v_lshl_add_u32 v%d, v%d, 7, v%d" % (V_TE, V_TE + 1, V_TE))
        g("s_lshl_b32 s%d, s%d, 11" % (S_T0, S_W))
        g("v_add_u32 v%d, s%d, v%d" % (V_TE, S_T0, V_TE))
        g.exec_set(0xF0000F0000F0000F)
        for i in range(8):
            g("ds_write_b128 v%d, v[%d:%d] offset:%d" % (V_TE, V_ACC + 4 * i, V_ACC + 4 * i + 3, L_QP + i * 16))
        g.exec_set(-1)
        g("s_waitcnt lgkmcnt(0)")
        g("s_add_u32 s%d, s%d, 0x%x" % (S_T, S_T, EPOCH_C))
        g("s_barrier")
        g.stamp(2)
        g("s_cmp_gt_u32 s%d, 1" % S_W)
        g("s_cbranch_scc1 L_wait_q")
        g("v_and_b32 v%d, 31, v0" % V_TE)
        g("v_lshrrev_b32 v%d, 5, v0" % (V_TE + 1))
        g("v_and_b32 v%d, 7, v%d" % (V_TE + 2, V_TE))
        g("v_lshrrev_b32 v%d, 3, v%d" % (V_TE + 3, V_TE))
        g("v_lshl_add_u32 v%d, v%d, 2, v%d" % (V_TE + 2, V_TE + 2, V_TE + 3))
        g("v_lshlrev_b32 v%d, 2, v%d" % (V_TE + 2, V_TE + 2))
        g("v_lshl_add_u32 v%d, v%d, 7, v%d" % (V_TE + 2, V_TE + 1, V_TE + 2))
        for p in range(16):
            g("ds_read_b32 v%d, v%d offset:%d" % (V_D + p, V_TE + 2, L_QP + p * 512))
        g("v_lshrrev_b32 v%d, 2, v%d" % (V_TE, V_TE))
        g("v_lshlrev_b32 v%d, 4, v%d" % (V_TE, V_TE))
        g("v_lshl_add_u32 v%d, v%d, 14, v%d" % (V_TE, V_TE + 1, V_TE))
        g("s_lshl_b32 s%d, s%d, 16" % (S_T0, S_BR))
        g("s_lshl_b32 s%d, s%d, 7" % (S_T1, S_CB))
        g("s_add_u32 s%d, s%d, s%d" % (S_T0, S_T0, S_T1))
        g("s_add_u32 s%d, s%d, %d" % (S_SO, S_T0, WS_Q))
        g("v_mov_b32 v%d, s%d" % (V_TE + 3, S_T))
        g("s_waitcnt lgkmcnt(0)")
        for st in (1, 2, 4, 8):
            for p in range(0, 16, 2 * st):
                g("v_add_f32 v%d, v%d, v%d" % (V_D + p, V_D + p, V_D + p + st))
        g("v_cvt_pk_bf16_f32 v%d, v%d, v%d" % (V_D, V_D, V_D))
        g("s_mov_b32 s%d, 0x07060100" % S_T0)
        g("v_perm_b32 v%d, v%d, v%d, s%d" % (V_PERM, V_D, V_TE + 3, S_T0))
        for k in (1, 2, 3):
            g("v_mov_b32_dpp v%d, v%d quad_perm:[%d,%d,%d,%d] row_mask:0xf bank_mask:0xf" % (V_PERM + k, V_PERM, k, k, k, k))
        g.exec_set(0x1111111111111111)
        g.bstore(V_PERM, V_TE, WS, S_SO, 0, "sc1")
        g.exec_set(-1)
        g("s_cmp_lg_u32 s%d, 0" % S_W)
        g("s_cbranch_scc1 L_wait_q")
        g("s_waitcnt vmcnt(1)")
        xs, gs = X + 8, X + 12
        accg = V_S
        g("v_mov_b32 v%d, 0" % accg)
        for r in range(4):
            g("v_lshlrev_b32 v%d, 16, v%d" % (V_TE, xs + r))
            g("v_and_b32 v%d, s%d, v%d" % (V_TE + 1, S_HI16, xs + r))
            g("v_lshlrev_b32 v%d, 16, v%d" % (V_TE + 2, gs + r))
            g("v_and_b32 v%d, s%d, v%d" % (V_TE + 3, S_HI16, gs + r))
            g("v_mul_f32 v%d, v%d, v%d" % (V_TE, V_TE, V_TE + 2))
            g("v_mul_f32 v%d, v%d, v%d" % (V_TE + 1, V_TE + 1, V_TE + 3))
            g("v_cvt_pk_bf16_f32 v%d, v%d, v%d" % (V_TE, V_TE, V_TE + 1))
            g("v_lshlrev_b32 v%d, 16, v%d" % (V_TE + 1, V_TE))
            g("v_and_b32 v%d, s%d, v%d" % (V_TE, S_HI16, V_TE))
            g("v_add_f32 v%d, v%d, v%d" % (accg, accg, V_TE + 1))
            g("v_add_f32 v%d, v%d, v%d" % (accg, accg, V_TE))
        self.wave_sum_to63([accg])
        g("v_readlane_b32 s%d, v%d, 63" % (S_T0, accg))
        g("v_mov_b32 v%d, s%d" % (V_TE, S_T0))
        g.round_bf16(V_TE, V_TE)
        g("v_mul_f32 v%d, s%d, v%d" % (V_TE, S_L2E, V_TE))
        g("v_sub_f32 v%d, 0, v%d" % (V_TE, V_TE))
        g("v_exp_f32 v%d, v%d" % (V_TE, V_TE))
        g("v_add_f32 v%d, 1.0, v%d" % (V_TE, V_TE))
        g("v_rcp_f32 v%d, v%d" % (V_TE, V_TE))
        g.round_bf16(V_TE, V_TE)
        g("v_sub_f32 v%d, 1.0, v%d" % (V_TE + 1, V_TE))
        g.round_bf16(V_TE + 1, V_TE + 1)
        g("v_readfirstlane_b32 s%d, v%d" % (S_G, V_TE))
        g("v_readfirstlane_b32 s%d, v%d" % (S_OMG, V_TE + 1))
        g("v_and_b32 v%d, 3, v%d" % (V_TE, V_LANE))
        g("v_lshlrev_b32 v%d, 9, v%d" % (V_TE, V_TE))
        g("v_lshrrev_b32 v%d, 4, v%d" % (V_TE + 1, V_LANE))
        g("v_lshl_add_u32 v%d, v%d, 7, v%d" % (V_TE, V_TE + 1, V_TE))
        g("v_bfe_u32 v%d, v%d, 2, 2" % (V_TE + 1, V_LANE))
        g("v_lshl_add_u32 v%d, v%d, 5, v%d" % (V_TE, V_TE + 1, V_TE))
        g("s_lshl_b32 s%d, s%d, 14" % (S_T0, S_B))
        g("s_lshl_b32 s%d, s%d, 11" % (S_T1, S_HKV))
        g("s_add_u32 s%d, s%d, s%d" % (S_T0, S_T0, S_T1))
        g("s_add_u32 s%d, s%d, %d" % (S_T0, S_T0, WS_Q))
        g("s_add_u32 s%d, s%d, 65536" % (S_T1, S_T0))
        def qloads():
            g.bload(V_D, V_TE, WS, S_T0, 0, "sc1")
            g.bload(V_D + 4, V_TE, WS, S_T0, 16, "sc1")
            g.bload(V_D + 8, V_TE, WS, S_T1, 0, "sc1")
            g.bload(V_D + 12, V_TE, WS, S_T1, 16, "sc1")
        g.poll(qloads, [V_D + k for k in range(16)], "0xffff")
        for br in range(2):
            for t in range(4):
                g("v_perm_b32 v%d, v%d, v%d, s%d" % (V_PERM + 4 * br + t, V_D + 8 * br + 2 * t + 1, V_D + 8 * br + 2 * t, S_SELH))
        g("ds_write_b128 v%d, v[%d:%d] offset:%d" % (V_OFFL, V_PERM, V_PERM + 3, L_QB))
        g("ds_write_b128 v%d, v[%d:%d] offset:%d" % (V_OFFL, V_PERM + 4, V_PERM + 7, L_QB + 1024))
        g("s_waitcnt lgkmcnt(0)")
        g("s_barrier")
        late_loads()
        g("s_branch L_aphase")
        g("L_wait_q:")
        g("s_barrier")
        g("L_aphase:")
        g.stamp(3)
        g("ds_read_b128 v[%d:%d], v%d offset:%d" % (V_QA, V_QA + 3, V_OFFL, L_QB))
        g("ds_read_b128 v[%d:%d], v%d offset:%d" % (V_QB, V_QB + 3, V_OFFL, L_QB + 1024))
        for k in range(32):
            g("v_mov_b32 v%d, 0" % (V_ACC + k))
        g("s_waitcnt vmcnt(32) lgkmcnt(0)")
        SA = [V_X + 8 + G_ for G_ in range(4)]
        dbuf = [V_W, V_W + 16]
        g.qk_group([A_AK + 4 * j for j in range(0, 4)], V_QA, dbuf[0], None)
        for G_ in range(4):
            if G_ < 3:
                g.qk_group([A_AK + 16 * (G_ + 1) + 4 * j for j in range(4)], V_QA, dbuf[(G_ + 1) % 2], None)
            g.qk_extract(dbuf[G_ % 2], SA[G_])
        g("v_max3_f32 v%d, v%d, v%d, v%d" % (V_M, SA[0], SA[1], SA[2]))
        g("v_max_f32 v%d, v%d, v%d" % (V_M, V_M, SA[3]))
        g.head_allreduce(V_M, "v_max_f32", V_TE)
        g("v_mul_f32 v%d, s%d, v%d" % (V_ML, S_L2E, V_M))
        for G_ in range(4):
            g("v_fma_f32 v%d, v%d, s%d, -v%d" % (SA[G_], SA[G_], S_L2E, V_ML))
        for G_ in range(4):
            g("v_exp_f32 v%d, v%d" % (SA[G_], SA[G_]))
        g("v_add_f32 v%d, v%d, v%d" % (V_L, SA[0], SA[1]))
        g("v_add_f32 v%d, v%d, v%d" % (V_TE, SA[2], SA[3]))
        g("v_add_f32 v%d, v%d, v%d" % (V_L, V_L, V_TE))
        for T_ in range(2):
            g.p_operand(SA[2 * T_], V_POP)
            g.p_operand(SA[2 * T_ + 1], V_POP + 2)
            g("s_waitcnt vmcnt(%d)" % (24 if T_ == 0 else 16))
            vregs = [V_AV + 32 * T_ + 4 * j for j in range(8)]
            for i in range(9):
                if i < 8:
                    g.perm_operand(V_PERM + 4 * (i % 4), vregs, i)
                if i > 0:
                    pp = V_PERM + 4 * ((i - 1) % 4)
                    ac = V_ACC + 4 * (i - 1)
                    g("v_mfma_f32_16x16x32_bf16 v[%d:%d], v[%d:%d], v[%d:%d], v[%d:%d]" % (ac, ac + 3, pp, pp + 3, V_POP, V_POP + 3, ac, ac + 3))
        g.write_partial(0)
        g.stamp(4)
        for k in range(32):
            g("v_mov_b32 v%d, 0" % (V_ACC + k))
        g("v_mov_b32 v%d, 0xff7fffff" % V_M)
        g("v_mov_b32 v%d, 0xff7fffff" % V_ML)
        g("v_mov_b32 v%d, 0" % V_L)
        g("s_add_u32 s%d, s%d, 32" % (S_T0, S_SLOT))
        g("v_mov_b32 v%d, s%d" % (V_TK, S_T0))
        g("s_lshl_b32 s%d, s%d, 8" % (S_T0, S_PAIR))
        g("s_add_u32 s%d, s%d, %d" % (S_T0, S_T0, WS_CNT))
        g("v_mov_b32 v%d, s%d" % (V_CNT, S_T0))
        if not self.dyn or self.nstat > 2:
            g("s_mov_b32 s99, 1")
        g("L_loop:")
        g("s_waitcnt vmcnt(4)")
        g.qk_group([A_BK + 4 * j for j in range(4)], V_QB, V_D, None)
        g("v_readfirstlane_b32 s%d, v%d" % (S_NEXT, V_TK))
        g("s_mov_b32 s%d, 1" % S_LAST)
        g("s_cmp_ge_u32 s%d, 512" % S_NEXT)
        g("s_cbranch_scc1 L_nonext")
        g("s_mov_b32 s%d, 0" % S_LAST)
        g("s_lshl_b32 s%d, s%d, 12" % (S_KO, S_NEXT))
        g("s_add_u32 s%d, s%d, s%d" % (S_KO, S_KO, S_PB))
        for j in range(4):
            g.bload(A_BK + 4 * j, V_OFFK, KB, S_KO, j * 1024, nt, agpr=True)
        if self.dyn and self.nstat == 2:
            g.exec_set(1) if False else g("s_mov_b64 exec, 1")
            g("global_atomic_add v%d, v%d, v%d, s[90:91] sc0 sc1" % (V_TK, V_CNT, V_ONE))
            g("s_mov_b64 exec, -1")
        else:
            Ls = g.label("L_stat"); Lj = g.label("L_statj")
            g("s_add_u32 s99, s99, 1")
            g("s_cmp_lt_u32 s99, %d" % (self.nstat if self.dyn else 1000))
            g("s_cbranch_scc1 %s" % Ls)
            g("s_mov_b64 exec, 1")
            g("global_atomic_add v%d, v%d, v%d, s[90:91] sc0 sc1" % (V_TK, V_CNT, V_ONE))
            g("s_mov_b64 exec, -1")
            g("s_waitcnt_placeholder")
            g("s_branch %s" % Lj)
            g("%s:" % Ls)
            g("v_add_u32 v%d, 32, v%d" % (V_TK, V_TK))
            g("%s:" % Lj)
        g("L_nonext:")
        g.qk_extract(V_D, V_S)
        g("v_cmp_gt_f32 vcc, v%d, v%d" % (V_S, V_M))
        g("s_cbranch_vccnz L_slow")
        g("L_fast:")
        g("v_fma_f32 v%d, v%d, s%d, -v%d" % (V_P, V_S, S_L2E, V_ML))
        g("v_exp_f32 v%d, v%d" % (V_P, V_P))
        g("v_add_f32 v%d, v%d, v%d" % (V_L, V_L, V_P))
        g.p_operand(V_P, V_POP)
        g("s_cmp_eq_u32 s%d, 0" % S_LAST)
        g("s_cbranch_scc1 L_wv5")
        g("s_waitcnt vmcnt(0)")
        g("s_branch L_pv")
        g("L_wv5:")
        g("s_waitcnt vmcnt(%d)" % 5)
        g("L_pv:")
        vregs = [V_BV + 4 * j for j in range(4)]
        for i in range(8):
            g.perm_operand(V_PERM + 2 * i, vregs, i)
        g("s_cmp_lg_u32 s%d, 0" % S_LAST)
        g("s_cbranch_scc1 L_pvm")
        for j in range(4):
            g.bload(V_BV + 4 * j, V_OFFL, VB, S_KO, j * 1024, nt)
        g("L_pvm:")
        for i in range(8):
            ac = V_ACC + 4 * i
            g("v_mfma_f32_16x16x16_bf16 v[%d:%d], v[%d:%d], v[%d:%d], v[%d:%d]" % (ac, ac + 3, V_PERM + 2 * i, V_PERM + 2 * i + 1, V_POP, V_POP + 1, ac, ac + 3))
        g("s_cmp_eq_u32 s%d, 0" % S_LAST)
        g("s_cbranch_scc1 L_loop")
        g("s_branch L_bdone")
        g("L_slow:")
        g("v_mov_b32 v%d, v%d" % (V_P, V_S))
        g.head_allreduce(V_P, "v_max_f32", V_TE)
        g("v_max_f32 v%d, v%d, v%d" % (V_P, V_P, V_M))
        g("v_sub_f32 v%d, v%d, v%d" % (V_TE, V_M, V_P))
        g("v_mul_f32 v%d, s%d, v%d" % (V_TE, S_L2E, V_TE))
        g("v_exp_f32 v%d, v%d" % (V_TE, V_TE))
        g("v_mov_b32 v%d, v%d" % (V_M, V_P))
        g("v_mul_f32 v%d, s%d, v%d" % (V_ML, S_L2E, V_P))
        g("v_mul_f32 v%d, v%d, v%d" % (V_L, V_L, V_TE))
        for k in range(32):
            g("v_mul_f32 v%d, v%d, v%d" % (V_ACC + k, V_ACC + k, V_TE))
        g("s_branch L_fast")
        g("L_bdone:")
        g.stamp(5)
        g.write_partial(1)
        g("s_waitcnt lgkmcnt(0)")
        g("s_barrier")
        T0, T1, T2, T3 = V_TE, V_TE + 1, V_TE + 2, V_TE + 3
        g("v_lshrrev_b32 v%d, 7, v0" % T0)
        g("v_bfe_u32 v%d, v0, 5, 2" % T1)
        g("v_bfe_u32 v%d, v0, 2, 3" % T2)
        g("v_and_b32 v%d, 3, v0" % T3)
        g("v_lshl_add_u32 v%d, v%d, 2, v%d" % (V_X, T0, T1))
        g("v_lshlrev_b32 v%d, 5, v%d" % (V_X + 1, V_X))
        g("ds_read_b128 v[%d:%d], v%d offset:%d" % (V_D, V_D + 3, V_X + 1, L_ML))
        g("ds_read_b128 v[%d:%d], v%d offset:%d" % (V_D + 4, V_D + 7, V_X + 1, L_ML + 16))
        g("v_mul_u32_u24 v%d, %d, v%d" % (V_X + 2, 16 * HS, T0))
        g("v_mul_u32_u24 v%d, %d, v%d" % (V_X + 3, HS, T1))
        g("v_add_u32 v%d, v%d, v%d" % (V_X + 2, V_X + 2, V_X + 3))
        g("v_lshl_add_u32 v%d, v%d, 6, v%d" % (V_X + 2, T2, V_X + 2))
        g("v_lshl_add_u32 v%d, v%d, 4, v%d" % (V_X + 2, T3, V_X + 2))
        for w in range(4):
            g("ds_read_b128 v[%d:%d], v%d offset:%d" % (V_W + 4 * w, V_W + 4 * w + 3, V_X + 2, L_OP + w * 4 * HS))
        g("v_lshlrev_b32 v%d, 20, v%d" % (V_X + 4, T0))
        g("v_lshl_add_u32 v%d, v%d, 15, v%d" % (V_X + 4, T1, V_X + 4))
        g("v_lshl_add_u32 v%d, v%d, 13, v%d" % (V_X + 4, T3, V_X + 4))
        g("v_lshl_add_u32 v%d, v%d, 4, v%d" % (V_X + 4, T2, V_X + 4))
        g("s_lshl_b32 s%d, s%d, 17" % (S_T0, S_HKV))
        g("s_lshl_b32 s%d, s%d, 11" % (S_T1, S_B))
        g("s_add_u32 s%d, s%d, s%d" % (S_T0, S_T0, S_T1))
        g("s_lshl_b32 s%d, s%d, 8" % (S_T1, S_C))
        g("s_add_u32 s%d, s%d, s%d" % (S_T0, S_T0, S_T1))
        g("s_add_u32 s%d, s%d, %d" % (S_SO, S_T0, WS_MB1))
        g("v_mov_b32 v%d, s%d" % (V_X + 5, S_T))
        g("s_waitcnt lgkmcnt(4)")
        M_, A0 = V_X + 6, V_X + 8
        g("v_max3_f32 v%d, v%d, v%d, v%d" % (M_, V_D, V_D + 1, V_D + 2))
        g("v_max_f32 v%d, v%d, v%d" % (M_, M_, V_D + 3))
        for w in range(4):
            g("v_sub_f32 v%d, v%d, v%d" % (A0 + w, V_D + w, M_))
        for w in range(4):
            g("v_mul_f32 v%d, s%d, v%d" % (A0 + w, S_L2E, A0 + w))
        for w in range(4):
            g("v_exp_f32 v%d, v%d" % (A0 + w, A0 + w))
        Lr = V_X + 7
        g("v_mul_f32 v%d, v%d, v%d" % (Lr, A0, V_D + 4))
        for w in range(1, 4):
            g("v_fma_f32 v%d, v%d, v%d, v%d" % (Lr, A0 + w, V_D + 4 + w, Lr))
        g("s_waitcnt lgkmcnt(0)")
        O_ = V_PERM
        for r in range(4):
            g("v_mul_f32 v%d, v%d, v%d" % (O_ + r, A0, V_W + r))
        for w in range(1, 4):
            for r in range(4):
                g("v_fma_f32 v%d, v%d, v%d, v%d" % (O_ + r, A0 + w, V_W + 4 * w + r, O_ + r))
        for r in range(4):
            g("v_bfi_b32 v%d, s%d, v%d, v%d" % (O_ + r, S_TAGM, V_X + 5, O_ + r))
        g.bstore(O_, V_X + 4, WS, S_SO, 0, "sc1")
        g("v_bfi_b32 v%d, s%d, v%d, v%d" % (O_ + 4, S_TAGM, V_X + 5, M_))
        g("v_bfi_b32 v%d, s%d, v%d, v%d" % (O_ + 5, S_TAGM, V_X + 5, Lr))
        g("v_and_b32 v%d, s%d, v%d" % (O_ + 6, S_TAGM, V_X + 5))
        g("v_and_b32 v%d, s%d, v%d" % (O_ + 7, S_TAGM, V_X + 5))
        g.exec_set(0x0000000F0000000F)
        g.bstore(O_ + 4, V_X + 4, WS, S_SO, 128, "sc1")
        g.exec_set(-1)
        g.stamp(6)
        woregs = [V_WO + 4 * e for e in range(8)]
        for i in range(8):
            g.perm_operand(V_AV + 4 * i, woregs, i)
        g("v_and_b32 v%d, 7, v%d" % (T0, V_LANE))
        g("v_lshlrev_b32 v%d, 8, v%d" % (T0, T0))
        g("v_add_u32 v%d, 128, v%d" % (T1, T0))
        g("v_lshrrev_b32 v%d, 3, v%d" % (T2, V_LANE))
        g("v_lshl_add_u32 v%d, v%d, 4, v%d" % (T0, T2, T0))
        g("s_lshl_b32 s%d, s%d, 13" % (S_T0, S_ROLE))
        g("s_lshl_b32 s%d, s%d, 11" % (S_T1, S_W))
        g("s_add_u32 s%d, s%d, s%d" % (S_T0, S_T0, S_T1))
        g("s_add_u32 s%d, s%d, %d" % (S_SO, S_T0, WS_MB1))
        def oloads():
            g.bload(V_D, T0, WS, S_SO, 0, "sc1")
            g.bload(V_D + 4, T1, WS, S_SO, 0, "sc1")
        g.poll(oloads, [V_D + k for k in range(8)], "s%d" % S_TAGM)
        g.stamp(7)
        m_, l_ = V_D + 4, V_D + 5
        g("v_and_b32 v%d, s%d, v%d" % (m_, S_HI16, m_))
        Mx = V_X
        def red8(op, regs):
            for ctl in ("quad_perm:[1,0,3,2]", "quad_perm:[2,3,0,1]", "row_half_mirror"):
                for r in regs:
                    g("%s_dpp v%d, v%d, v%d %s row_mask:0xf bank_mask:0xf" % (op, r, r, r, ctl))
        g("v_mov_b32 v%d, v%d" % (Mx, m_))
        red8("v_max_f32", [Mx])
        g("v_sub_f32 v%d, v%d, v%d" % (Mx, m_, Mx))
        g("v_mul_f32 v%d, s%d, v%d" % (Mx, S_L2E, Mx))
        g("v_exp_f32 v%d, v%d" % (Mx, Mx))
        for r in (V_D, V_D + 1, V_D + 2, V_D + 3, l_):
            g("v_mul_f32 v%d, v%d, v%d" % (r, r, Mx))
        red8("v_add_f32", [V_D, V_D + 1, V_D + 2, V_D + 3, l_])
        g("v_rcp_f32 v%d, v%d" % (l_, l_))
        for r in range(4):
            g("v_mul_f32 v%d, v%d, v%d" % (V_D + r, V_D + r, l_))
        g("v_cvt_pk_bf16_f32 v%d, v%d, v%d" % (V_PERM, V_D, V_D + 1))
        g("v_cvt_pk_bf16_f32 v%d, v%d, v%d" % (V_PERM + 1, V_D + 2, V_D + 3))
        g("v_lshlrev_b32 v%d, 3, v%d" % (T2, T2))
        g("s_lshl_b32 s%d, s%d, 6" % (S_T0, S_W))
        g("v_add_u32 v%d, s%d, v%d" % (T2, S_T0, T2))
        g.exec_set(0x0101010101010101)
        g("ds_write_b64 v%d, v[%d:%d] offset:%d" % (T2, V_PERM, V_PERM + 1, L_PB))
        g.exec_set(-1)
        g("v_and_b32 v%d, 3, v%d" % (T0, V_LANE))
        g("v_lshlrev_b32 v%d, 6, v%d" % (T0, T0))
        g("v_lshrrev_b32 v%d, 4, v%d" % (T1, V_LANE))
        g("v_lshl_add_u32 v%d, v%d, 4, v%d" % (T0, T1, T0))
        g("s_waitcnt lgkmcnt(0)")
        g("s_barrier")
        g("ds_read_b128 v[%d:%d], v%d offset:%d" % (V_POP, V_POP + 3, T0, L_PB))
        g("v_and_b32 v%d, 3, v%d" % (T2, V_LANE))
        g("v_lshlrev_b32 v%d, 19, v%d" % (T2, T2))
        g("v_lshl_add_u32 v%d, v%d, 15, v%d" % (T2, T1, T2))
        g("v_bfe_u32 v%d, v%d, 2, 2" % (T3, V_LANE))
        g("v_lshl_add_u32 v%d, v%d, 13, v%d" % (T2, T3, T2))
        g("s_lshl_b32 s%d, s%d, 17" % (S_T0, S_W))
        g("s_lshl_b32 s%d, s%d, 5" % (S_T1, S_ROLE))
        g("s_add_u32 s%d, s%d, s%d" % (S_T0, S_T0, S_T1))
        g("s_add_u32 s%d, s%d, %d" % (S_SO, S_T0, WS_MB3))
        g("s_waitcnt lgkmcnt(0)")
        for i in range(8):
            g("v_mfma_f32_16x16x32_bf16 v[%d:%d], v[%d:%d], v[%d:%d], 0" % (V_ACC + 4 * i, V_ACC + 4 * i + 3, V_AV + 4 * i, V_AV + 4 * i + 3, V_POP, V_POP + 3))
        Z = V_D
        for beta in range(4):
            for i in range(8):
                g("v_mov_b32_dpp v%d, v%d quad_perm:[0,1,2,3] row_mask:0xf bank_mask:0x%x" % (Z + i, V_ACC + 4 * i + beta, 1 << beta))
        for i in range(8):
            g("v_bfi_b32 v%d, s%d, v%d, v%d" % (Z + i, S_TAGM, V_X + 5, Z + i))
        g.bstore(Z, T2, WS, S_SO, 0, "sc1")
        g.bstore(Z + 4, T2, WS, S_SO, 16, "sc1")
        g.stamp(8)
        g("v_lshlrev_b32 v%d, 5, v%d" % (T0, V_LANE))
        g("s_lshl_b32 s%d, s2, 13" % S_T0)
        g("s_lshl_b32 s%d, s%d, 11" % (S_T1, S_W))
        g("s_add_u32 s%d, s%d, s%d" % (S_T0, S_T0, S_T1))
        g("s_add_u32 s%d, s%d, %d" % (S_SO, S_T0, WS_MB3))
        F = V_W
        def yloads():
            g.bload(F, T0, WS, S_SO, 0, "sc1")
            g.bload(F + 4, T0, WS, S_SO, 16, "sc1")
        g.poll(yloads, [F + k for k in range(8)], "s%d" % S_TAGM)
        g.stamp(9)
        self.wave_sum_to63([F + k for k in range(8)])
        g("s_lshl_b32 s%d, s%d, 5" % (S_T0, S_W))
        g("v_mov_b32 v%d, s%d" % (T1, S_T0))
        g("s_mov_b32 exec_lo, 0")
        g("s_mov_b32 exec_hi, 0x80000000")
        g("ds_write_b128 v%d, v[%d:%d] offset:%d" % (T1, F, F + 3, L_FR))
        g("ds_write_b128 v%d, v[%d:%d] offset:%d" % (T1, F + 4, F + 7, L_FR + 16))
        g.exec_set(-1)
        g("s_waitcnt lgkmcnt(0)")
        g("s_barrier")
        g("s_cmp_lg_u32 s%d, 0" % S_W)
        g("s_cbranch_scc1 L_fin")
        g("v_and_b32 v%d, 7, v%d" % (T0, V_LANE))
        g("v_lshlrev_b32 v%d, 2, v%d" % (T1, T0))
        for w in range(4):
            g("ds_read_b32 v%d, v%d offset:%d" % (V_D + w, T1, L_FR + 32 * w))
        g("s_lshl_b32 s%d, s2, 4" % S_SO)
        g("v_lshlrev_b32 v%d, 1, v%d" % (T2, T0))
        g("s_waitcnt lgkmcnt(0)")
        g("v_add_f32 v%d, v%d, v%d" % (V_D, V_D, V_D + 1))
        g("v_add_f32 v%d, v%d, v%d" % (V_D + 2, V_D + 2, V_D + 3))
        g.round_bf16(V_D, V_D)
        g.round_bf16(V_D + 2, V_D + 2)
        g("v_mul_f32 v%d, s%d, v%d" % (V_D, S_G, V_D))
        g("v_mul_f32 v%d, s%d, v%d" % (V_D + 2, S_OMG, V_D + 2))
        g.round_bf16(V_D, V_D)
        g.round_bf16(V_D + 2, V_D + 2)
        g("v_add_f32 v%d, v%d, v%d" % (V_D, V_D, V_D + 2))
        g("v_cvt_pk_bf16_f32 v%d, v%d, v%d" % (V_D, V_D, V_D))
        g.exec_set(0xFF)
        g("buffer_store_short v%d, v%d, s[%d:%d], s%d offen sc1" % (V_D, T2, OUT, OUT + 3, S_SO))
        g.exec_set(-1)
        g("s_cmp_lg_u32 s2, 0")
        g("s_cbranch_scc1 L_fin")
        g("v_mov_b32 v%d, 0" % T0)
        g("v_mov_b32 v%d, s%d" % (T1, S_T))
        g.exec_set(1)
        g.bstore(T1, T0, WS, None, WS_EPOCH, "sc1", n=1)
        g.exec_set(-1)
        g("L_fin:")
        if g.stamps:
            g.stamp(10)
            g("s_waitcnt lgkmcnt(0)")
            g("s_lshl_b32 s%d, s2, 2" % S_T0)
            g("s_add_u32 s%d, s%d, s%d" % (S_T0, S_T0, S_W))
            g("s_mul_i32 s%d, s%d, %d" % (S_T0, S_T0, 8 * NSTAMP))
            g("s_add_u32 s%d, s%d, 0x%x" % (S_SO, S_T0, WS_STAMP))
            g("v_mov_b32 v%d, 0" % T0)
            g.exec_set(1)
            for k in range(NSTAMP):
                r = stamp_reg(k)
                g("v_mov_b32 v%d, s%d" % (V_D, r))
                g("v_mov_b32 v%d, s%d" % (V_D + 1, r + 1))
                g.bstore(V_D, T0, WS, S_SO, 8 * k, "", n=2)
                g("s_nop 1")
            g.exec_set(-1)
        g("L_end:")
        g("s_endpgm")
        self.body_end = len(g.a.lines)
        g('.section .rodata,"a"')
        g(".p2align 6")
        kernel_desc(g.a, K, 256 + NAGPR, 102, 256)
        return self.finish()

    def wave_sum_to63(self, regs):
        g = self
        for ctl in ("quad_perm:[1,0,3,2] row_mask:0xf", "quad_perm:[2,3,0,1] row_mask:0xf", "row_half_mirror row_mask:0xf",
                    "row_mirror row_mask:0xf", "row_bcast:15 row_mask:0xa", "row_bcast:31 row_mask:0xc"):
            for r in regs:
                g("v_add_f32_dpp v%d, v%d, v%d %s bank_mask:0xf" % (r, r, r, ctl))

    def finish(self):
        lines = self.a.lines
        body = lines[self.body_start:self.body_end]
        fixed, n = hazard.fix_all(body)
        out = lines[:self.body_start] + fixed + lines[self.body_end:]
        self.nops = n
        return "\n".join(out) + "\n"

NSTAMP = 11
def stamp_reg(k):
    return 100 if k == 0 else S_STAMP + 2 * (k - 1)

if __name__ == "__main__":
    ap = argparse.ArgumentParser()
    ap.add_argument("-o", required=True)
    ap.add_argument("--stamps", action="store_true")
    ap.add_argument("--nt", default="nt")
    x = ap.parse_args()
    g = G(stamps=x.stamps, ntf=x.nt)
    t = g.build()
    open(x.o, "w").write(t)
    print("lines", t.count("\n"), "nop wait states inserted", g.nops)
```

```python
import argparse, struct
from asmlib import *
import hazard

def f32(x):
    return "0x%08x" % struct.unpack("<I", struct.pack("<f", x))[0]

WS_EPOCH = 0x0
WS_CNT   = 0x1000
WS_Q     = 0x10000
WS_MB1   = 0x40000
WS_ML    = 0x140000
WS_MB3   = 0x200000
WS_STAMP = 0x1000000
EPOCH_C  = 0x9E3779B1
L_QP = 0
L_QB = 8192
L_OP = 10240
HS = 528
L_ML = L_OP + 2 * 4 * 4 * HS
L_PB = L_ML + 256
L_FR = L_PB + 256
LDS_BYTES = L_FR + 1024

S_W = 3
S_L2E, S_SCALE, S_HI16, S_TAGM = 4, 5, 6, 7
KA, VA, KB, VB, WQ, WO, XS, WS, OUT, GW = 8, 12, 16, 20, 24, 28, 32, 36, 40, 44
S_C, S_PAIR, S_B, S_HKV, S_SLOT, S_BR, S_CB, S_T = 48, 49, 50, 51, 52, 53, 54, 55
S_SO, S_PB, S_KO, S_LAST, S_NEXT, S_SPIN, S_SELL, S_SELH = 56, 57, 58, 59, 60, 61, 62, 63
S_WSP = 90
S_T0, S_T1, S_T2, S_T3 = 92, 93, 94, 95
S_ROLE, S_G, S_OMG = 96, 97, 98
S_STAMP = 64
V_TID, V_LANE, V_OFFK, V_OFFL, V_ONE, V_CNT, V_TK = 0, 1, 2, 3, 4, 5, 6
V_M, V_ML, V_L, V_S, V_P = 7, 8, 9, 10, 11
V_PR = 12
V_POP = 16
V_QA, V_QB = 20, 24
V_TE = 28
V_ACC = 32
V_W = 64
V_AV = 96
V_WO = 160
V_BV = 192
V_D = 208
V_PERM = 224
V_X = 240
A_AK = 0
A_BK = 64
NAGPR = 84

SPIN_MAX = 20000

class G:
    def __init__(self, stamps=False, ntf="nt", dyn=True, nstat=2, pace=8, nak1=8, skew=True, sleep=0, pretouch=0, prostamps=False):
        self.prostamps = prostamps
        self.pretouch = pretouch
        self.sleep = sleep
        self.pace = pace
        self.nak1 = nak1
        self.skew = skew
        self.a = Asm()
        self.stamps = stamps
        self.nt = ntf
        self.dyn = dyn
        self.nstat = nstat
        self.nstamp = 0
        self.uid = 0

    def __call__(self, s):
        self.a(s)

    def label(self, p):
        self.uid += 1
        return "%s_%d" % (p, self.uid)

    def stamp(self, k):
        if self.stamps and (not self.prostamps or k == 0):
            r = stamp_reg(k)
            self("s_memrealtime s[%d:%d]" % (r, r + 1))

    def pstamp(self, k):
        if self.stamps and self.prostamps:
            r = stamp_reg(k)
            self("s_memrealtime s[%d:%d]" % (r, r + 1))

    def srd(self, dst, src, nbytes):
        self("s_mov_b32 s%d, s%d" % (dst, src))
        self("s_and_b32 s%d, s%d, 0xffff" % (dst + 1, src + 1))
        self("s_mov_b32 s%d, 0x%x" % (dst + 2, nbytes))
        self("s_mov_b32 s%d, 0x20000" % (dst + 3))

    def bload(self, dst, voff, srd, soff, imm=0, flags="", n=4, agpr=False):
        r = "%s[%d:%d]" % ("a" if agpr else "v", dst, dst + n - 1) if n > 1 else "%s%d" % ("a" if agpr else "v", dst)
        op = {1: "dword", 2: "dwordx2", 4: "dwordx4"}[n]
        so = "s%d" % soff if soff is not None else "0"
        self("buffer_load_%s %s, v%d, s[%d:%d], %s offen offset:%d %s" % (op, r, voff, srd, srd + 3, so, imm, flags))

    def bstore(self, src, voff, srd, soff, imm=0, flags="", n=4):
        r = "v[%d:%d]" % (src, src + n - 1) if n > 1 else "v%d" % src
        op = {1: "dword", 2: "dwordx2", 4: "dwordx4"}[n]
        so = "s%d" % soff if soff is not None else "0"
        self("buffer_store_%s %s, v%d, s[%d:%d], %s offen offset:%d %s" % (op, r, voff, srd, srd + 3, so, imm, flags))

    def exec_set(self, mask):
        if mask == -1:
            self("s_mov_b64 exec, -1")
        else:
            self("s_mov_b32 exec_lo, 0x%x" % (mask & 0xffffffff))
            self("s_mov_b32 exec_hi, 0x%x" % (mask >> 32))

    def round_bf16(self, dst, src):
        self("v_cvt_pk_bf16_f32 v%d, v%d, v%d" % (dst, src, src))
        self("v_and_b32 v%d, s%d, v%d" % (dst, S_HI16, dst))

    def perm_operand(self, dst, src_regs, i):
        r, half = i >> 1, i & 1
        sel = S_SELH if half else S_SELL
        for t in range(len(src_regs) // 2):
            self("v_perm_b32 v%d, v%d, v%d, s%d" % (dst + t, src_regs[2 * t + 1] + r, src_regs[2 * t] + r, sel))

    def qk_group(self, kregs, qop, dbase, out):
        for j in range(4):
            self("v_mfma_f32_16x16x32_bf16 v[%d:%d], a[%d:%d], v[%d:%d], 0" % (dbase + 4 * j, dbase + 4 * j + 3, kregs[j], kregs[j] + 3, qop, qop + 3))

    def qk_extract(self, dbase, out):
        for j in range(4):
            for r in range(4):
                n = (4 * (j - r)) % 16
                ctl = "quad_perm:[0,1,2,3]" if n == 0 else "row_ror:%d" % n
                self("v_mov_b32_dpp v%d, v%d %s row_mask:0xf bank_mask:0x%x" % (V_PR + r, dbase + 4 * j + r, ctl, 1 << j))
        self("v_add_f32 v%d, v%d, v%d" % (V_PR, V_PR, V_PR + 1))
        self("v_add_f32 v%d, v%d, v%d" % (V_PR + 2, V_PR + 2, V_PR + 3))
        self("v_add_f32 v%d, v%d, v%d" % (out, V_PR, V_PR + 2))
        self.round_bf16(out, out)
        self("v_mul_f32 v%d, s%d, v%d" % (out, S_SCALE, out))
        self.round_bf16(out, out)

    def head_allreduce(self, reg, op, tmp):
        self("%s_dpp v%d, v%d, v%d row_ror:4 row_mask:0xf bank_mask:0xf" % (op, reg, reg, reg))
        self("%s_dpp v%d, v%d, v%d row_ror:8 row_mask:0xf bank_mask:0xf" % (op, reg, reg, reg))
        self("v_mov_b32 v%d, v%d" % (tmp, reg))
        self("v_permlane16_swap_b32 v%d, v%d" % (reg, tmp))
        self("%s v%d, v%d, v%d" % (op, reg, reg, tmp))
        self("v_mov_b32 v%d, v%d" % (tmp, reg))
        self("v_permlane32_swap_b32 v%d, v%d" % (reg, tmp))
        self("%s v%d, v%d, v%d" % (op, reg, reg, tmp))

    def p_operand(self, p, dst):
        for e in (1, 2, 3):
            self("v_mov_b32_dpp v%d, v%d row_shl:%d row_mask:0xf bank_mask:0xf bound_ctrl:0" % (V_TE + e, p, 4 * e))
        self("v_cvt_pk_bf16_f32 v%d, v%d, v%d" % (dst, p, V_TE + 1))
        self("v_cvt_pk_bf16_f32 v%d, v%d, v%d" % (dst + 1, V_TE + 2, V_TE + 3))

    def write_partial(self, br):
        self.head_allreduce(V_L, "v_add_f32", V_X)
        self("v_and_b32 v%d, 3, v%d" % (V_X, V_LANE))
        self("v_mul_u32_u24 v%d, %d, v%d" % (V_X, HS, V_X))
        self("v_lshrrev_b32 v%d, 4, v%d" % (V_X + 1, V_LANE))
        self("v_lshl_add_u32 v%d, v%d, 7, v%d" % (V_X, V_X + 1, V_X))
        self("s_mul_i32 s%d, s%d, %d" % (S_T0, S_W, 4 * HS))
        self("s_add_u32 s%d, s%d, %d" % (S_T0, S_T0, L_OP + br * 16 * HS))
        self("v_add_u32 v%d, s%d, v%d" % (V_X, S_T0, V_X))
        self("v_lshlrev_b32 v%d, 5, v%d" % (V_X + 1, V_LANE))
        self("s_lshl_b32 s%d, s%d, 2" % (S_T0, S_W))
        self("s_add_u32 s%d, s%d, %d" % (S_T0, S_T0, L_ML + br * 128))
        self("v_add_u32 v%d, s%d, v%d" % (V_X + 1, S_T0, V_X + 1))
        self.exec_set(0x000F000F000F000F)
        for i in range(8):
            self("ds_write_b128 v%d, v[%d:%d] offset:%d" % (V_X, V_ACC + 4 * i, V_ACC + 4 * i + 3, i * 16))
        self.exec_set(0xF)
        self("ds_write_b32 v%d, v%d" % (V_X + 1, V_M))
        self("ds_write_b32 v%d, v%d offset:16" % (V_X + 1, V_L))
        self.exec_set(-1)

    def tagcheck(self, regs, mask_sgpr_or_lit, acc, tmp):
        self("v_xor_b32 v%d, s%d, v%d" % (acc, S_T, regs[0]))
        rest = regs[1:]
        k = 0
        while k < len(rest):
            if k + 1 < len(rest):
                self("v_xor_b32 v%d, s%d, v%d" % (tmp, S_T, rest[k]))
                self("v_xor_b32 v%d, s%d, v%d" % (tmp + 1, S_T, rest[k + 1]))
                self("v_or3_b32 v%d, v%d, v%d, v%d" % (acc, acc, tmp, tmp + 1))
                k += 2
            else:
                self("v_xor_b32 v%d, s%d, v%d" % (tmp, S_T, rest[k]))
                self("v_or_b32 v%d, v%d, v%d" % (acc, acc, tmp))
                k += 1
        self("v_and_b32 v%d, %s, v%d" % (acc, mask_sgpr_or_lit, acc))
        self("v_cmp_ne_u32 vcc, 0, v%d" % acc)

    def poll(self, loads, regs, mask):
        L = self.label("L_poll"); Ld = self.label("L_polled")
        self("s_mov_b32 s%d, 0" % S_SPIN)
        self("%s:" % L)
        loads()
        self("s_add_u32 s%d, s%d, 1" % (S_SPIN, S_SPIN))
        self("s_waitcnt vmcnt(0)")
        self.tagcheck(regs, mask, V_X + 12, V_X + 13)
        self("s_cbranch_vccz %s" % Ld)
        self("s_mov_b64 exec, vcc")
        if self.sleep: self("s_sleep %d" % self.sleep)
        self("s_cmp_lt_u32 s%d, %d" % (S_SPIN, SPIN_MAX))
        self("s_cbranch_scc1 %s" % L)
        self("%s:" % Ld)
        self("s_mov_b64 exec, -1")

    def build(self):
        g = self
        nt = self.nt
        K = NAME + "_kernel"
        g(HEADER_KARG.rstrip())
        g("; @launch grid=(256,1,1) block=(256,1,1) lds=%d" % LDS_BYTES)
        g('.amdgcn_target "amdgcn-amd-amdhsa--gfx950"')
        g(".text")
        kernel_begin(g.a, K)
        self.body_start = len(g.a.lines)
        g("s_cmp_ge_u32 s2, 256")
        g("s_cbranch_scc1 L_end")
        g.stamp(0)
        g("s_load_dwordx16 s[64:79], s[0:1], 0")
        g("s_load_dwordx8 s[80:87], s[0:1], 64")
        g("s_load_dwordx4 s[88:91], s[0:1], 96")
        g("v_and_b32 v%d, 63, v0" % V_LANE)
        g("v_lshrrev_b32 v%d, 6, v0" % V_X)
        g("v_readfirstlane_b32 s%d, v%d" % (S_W, V_X))
        g("s_and_b32 s%d, s2, 7" % S_C)
        g("s_lshr_b32 s%d, s2, 3" % S_T0)
        g("s_lshl_b32 s%d, s%d, 2" % (S_T1, S_C))
        g("s_add_u32 s%d, s%d, s%d" % (S_T0, S_T0, S_T1))
        g("s_and_b32 s%d, s%d, 31" % (S_PAIR, S_T0))
        g("s_lshr_b32 s%d, s%d, 3" % (S_B, S_PAIR))
        g("s_and_b32 s%d, s%d, 7" % (S_HKV, S_PAIR))
        g("s_lshl_b32 s%d, s%d, 2" % (S_SLOT, S_C))
        g("s_add_u32 s%d, s%d, s%d" % (S_SLOT, S_SLOT, S_W))
        g("s_lshl_b32 s%d, s%d, 21" % (S_PB, S_PAIR))
        g("s_lshr_b32 s%d, s2, 7" % S_BR)
        g("s_and_b32 s%d, s2, 0x70" % S_CB)
        g("s_and_b32 s%d, s2, 7" % S_T0)
        g("s_lshl_b32 s%d, s%d, 1" % (S_T0, S_T0))
        g("s_or_b32 s%d, s%d, s%d" % (S_CB, S_CB, S_T0))
        g("s_bfe_u32 s%d, s2, 0x10003" % S_T0)
        g("s_or_b32 s%d, s%d, s%d" % (S_CB, S_CB, S_T0))
        g("s_lshl_b32 s%d, s%d, 7" % (S_ROLE, S_BR))
        g("s_or_b32 s%d, s%d, s%d" % (S_ROLE, S_ROLE, S_CB))
        g("s_mov_b32 s%d, %s" % (S_L2E, f32(1.4426950408889634)))
        g("s_mov_b32 s%d, %s" % (S_SCALE, f32(128 ** -0.5)))
        g("s_mov_b32 s%d, 0xffff0000" % S_HI16)
        g("s_mov_b32 s%d, 0x3ff" % S_TAGM)
        g("s_mov_b32 s%d, 0x05040100" % S_SELL)
        g("s_mov_b32 s%d, 0x07060302" % S_SELH)
        X = V_X
        g("v_lshlrev_b32 v%d, 4, v%d" % (V_OFFL, V_LANE))
        g("v_lshrrev_b32 v%d, 4, v%d" % (X + 1, V_LANE))
        g("v_bfe_u32 v%d, v%d, 2, 2" % (X + 2, V_LANE))
        g("v_and_b32 v%d, 3, v%d" % (X + 3, V_LANE))
        g("v_lshlrev_b32 v%d, 6, v%d" % (V_OFFK, X + 1))
        g("v_lshl_add_u32 v%d, v%d, 8, v%d" % (V_OFFK, X + 2, V_OFFK))
        g("v_lshl_add_u32 v%d, v%d, 4, v%d" % (V_OFFK, X + 3, V_OFFK))
        g("v_lshlrev_b32 v%d, 18, v%d" % (X + 4, X + 1))
        g("v_lshl_add_u32 v%d, v%d, 16, v%d" % (X + 4, X + 2, X + 4))
        g("v_lshl_add_u32 v%d, v%d, 4, v%d" % (X + 4, X + 3, X + 4))
        g("v_lshlrev_b32 v%d, 10, v%d" % (X + 5, X + 3))
        g("v_lshl_add_u32 v%d, v%d, 6, v%d" % (X + 5, X + 1, X + 5))
        g("v_lshl_add_u32 v%d, v%d, 4, v%d" % (X + 5, X + 2, X + 5))
        g("v_and_b32 v%d, 15, v%d" % (X + 6, V_LANE))
        g("v_lshlrev_b32 v%d, 4, v%d" % (X + 6, X + 6))
        g("v_lshl_add_u32 v%d, v%d, 11, v%d" % (X + 6, X + 1, X + 6))
        g("v_mov_b32 v%d, 1" % V_ONE)
        g("s_waitcnt lgkmcnt(0)")
        if self.prostamps: g("s_memrealtime s[98:99]")
        g("s_load_dword s%d, s[90:91], 0" % S_T)
        g("s_cmp_eq_u32 s%d, 0" % S_BR)
        g("s_cselect_b32 s%d, s70, s80" % S_T0)
        g("s_cselect_b32 s%d, s71, s81" % S_T1)
        g("s_cselect_b32 s%d, s72, s82" % S_T2)
        g("s_cselect_b32 s%d, s73, s83" % S_T3)
        g.srd(WQ, S_T0, 0x400000)
        g.srd(XS, 64, 4096)
        g.srd(WS, 90, 285221888)
        if self.prostamps:
            g.srd(KA, 66, 0x4000000); g.srd(VA, 68, 0x4000000); g.srd(KB, 76, 0x4000000); g.srd(VB, 78, 0x4000000)
            g.srd(WO, S_T2, 0x400000); g.srd(GW, 84, 1024); g.srd(OUT, 86, 4096)
            g("s_waitcnt lgkmcnt(0)")
            g("s_mov_b32 s64, s98"); g("s_mov_b32 s65, s99")
        g("s_and_b32 s%d, s%d, 0x8f" % (S_SO, S_ROLE))
        g("s_cmp_eq_u32 s%d, 0x80" % S_SO)
        g("s_cselect_b32 s%d, 1, 0" % S_SO)
        g("s_cmp_eq_u32 s%d, 0" % S_W)
        g("s_cselect_b32 s%d, s%d, 0" % (S_SO, S_SO))
        g("s_cmp_eq_u32 s%d, 0" % S_SO)
        g("s_cbranch_scc1 L_noinit")
        g("s_lshr_b32 s%d, s%d, 4" % (S_SO, S_CB))
        g("s_lshl_b32 s%d, s%d, 8" % (S_SO, S_SO))
        g("s_add_u32 s%d, s%d, %d" % (S_SO, S_SO, WS_CNT))
        g("v_lshlrev_b32 v%d, 11, v%d" % (X + 7, V_LANE))
        g("v_mov_b32 v%d, %d" % (X + 8, 32 * self.nstat))
        g.exec_set(0xF)
        g.bstore(X + 8, X + 7, WS, S_SO, 0, "sc1", n=1)
        g.exec_set(-1)
        g("L_noinit:")
        g("s_lshl_b32 s%d, s%d, 20" % (S_SO, S_W))
        g("s_lshl_b32 s%d, s%d, 6" % (S_KO, S_CB))
        g("s_add_u32 s%d, s%d, s%d" % (S_SO, S_SO, S_KO))
        for e in range(8):
            g.bload(V_W + 4 * e, X + 4, WQ, S_SO, 0, nt)
            if e < 7:
                g("s_add_u32 s%d, s%d, 8192" % (S_SO, S_SO))
        g("s_lshl_b32 s%d, s%d, 8" % (S_SO, S_W))
        g.bload(V_POP, X + 5, XS, S_SO, 0, "")
        g.pstamp(2)
        if not self.prostamps:
            g.srd(KA, 66, 0x4000000)
            g.srd(VA, 68, 0x4000000)
            g.srd(KB, 76, 0x4000000)
            g.srd(VB, 78, 0x4000000)
            g.srd(WO, S_T2, 0x400000)
            g.srd(GW, 84, 1024)
            g.srd(OUT, 86, 4096)
        g("s_lshl_b32 s%d, s%d, 14" % (S_KO, S_SLOT))
        g("s_add_u32 s%d, s%d, s%d" % (S_KO, S_KO, S_PB))
        g("s_add_u32 s%d, s%d, %d" % (S_KO, S_KO, 6144 * 256))
        g("s_barrier")
        g.pstamp(3)
        def ak_loads(j0, j1, pace=None):
            for j in range(j0, j1):
                if j % 4 == 0:
                    if pace is not None: g("s_waitcnt vmcnt(%d)" % pace)
                    g("s_add_u32 s%d, s%d, %d" % (S_SO, S_KO, (j // 4) * 4096))
                g.bload(A_AK + 4 * j, V_OFFK, KA, S_SO, (j % 4) * 1024, nt, agpr=True)
        NAK1 = self.nak1
        ak_loads(0, NAK1)
        g.stamp(1)
        g.pstamp(4)

        def late_loads(pace=None):
            def p():
                if pace is not None: g("s_waitcnt vmcnt(%d)" % pace)
            ak_loads(NAK1, 16, pace)
            for j in range(16):
                if j % 4 == 0:
                    p()
                    g("s_add_u32 s%d, s%d, %d" % (S_SO, S_KO, (j // 4) * 4096))
                g.bload(V_AV + 4 * j, V_OFFL, VA, S_SO, (j % 4) * 1024, nt)
            g("s_lshl_b32 s%d, s%d, 15" % (S_T0, S_CB))
            g("s_lshl_b32 s%d, s%d, 8" % (S_T1, S_W))
            g("s_add_u32 s%d, s%d, s%d" % (S_T0, S_T0, S_T1))
            for e in range(8):
                if e % 4 == 0: p()
                g("s_add_u32 s%d, s%d, %d" % (S_SO, S_T0, (8 * (e & 3) + (e >> 2)) * 1024))
                g.bload(V_WO + 4 * e, V_X + 6, WO, S_SO, 0, nt)
            g("s_lshl_b32 s%d, s%d, 12" % (S_KO, S_SLOT))
            g("s_add_u32 s%d, s%d, s%d" % (S_KO, S_KO, S_PB))
            p()
            for j in range(4):
                g.bload(A_BK + 4 * j, V_OFFK, KB, S_KO, j * 1024, nt, agpr=True)
            p()
            for j in range(4):
                g.bload(V_BV + 4 * j, V_OFFL, VB, S_KO, j * 1024, nt)
        self.late_loads = late_loads

        def pretouch():
            TT = V_TE
            n = 0
            if self.pretouch == 2:
                g("v_and_b32 v%d, 7, v%d" % (TT, V_LANE))
                g("s_lshl_b32 s%d, s%d, 3" % (S_T1, S_W))
                if self.skew:
                    g("s_add_u32 s%d, s%d, s%d" % (S_T1, S_T1, S_ROLE))
                g("v_add_u32 v%d, s%d, v%d" % (TT, S_T1, TT))
                g("v_and_b32 v%d, 31, v%d" % (TT, TT))
                g("v_lshlrev_b32 v%d, 4, v%d" % (TT + 1, TT))
                g("v_lshlrev_b32 v%d, 7, v%d" % (TT, TT))
                g("s_lshl_b32 s%d, s%d, 12" % (S_T0, S_ROLE))
                g("s_add_u32 s%d, s%d, %d" % (S_SO, S_T0, WS_MB1))
                g("s_mov_b64 exec, 0xff")
                g.bload(80, TT, WS, S_SO, 0, "sc1", n=1, agpr=True)
                g("s_lshl_b32 s%d, s%d, 9" % (S_T0, S_ROLE))
                g("s_add_u32 s%d, s%d, %d" % (S_SO, S_T0, WS_ML))
                g.bload(81, TT + 1, WS, S_SO, 0, "sc1", n=1, agpr=True)
                g("s_mov_b64 exec, -1")
                g("s_and_b32 s%d, s2, 127" % S_T0)
                g("s_lshl_b32 s%d, s%d, 14" % (S_T0, S_T0))
                g("s_lshl_b32 s%d, s%d, 12" % (S_T1, S_W))
                g("s_add_u32 s%d, s%d, s%d" % (S_T0, S_T0, S_T1))
                g("s_add_u32 s%d, s%d, %d" % (S_SO, S_T0, WS_MB3))
                g("v_lshlrev_b32 v%d, 6, v%d" % (TT, V_LANE))
                g.bload(82, TT, WS, S_SO, 0, "sc1", n=1, agpr=True)
                n += 3
            else:
                g("s_mov_b64 exec, 3")
                g("v_lshlrev_b32 v%d, 20, v%d" % (TT, V_LANE))
                g("s_lshl_b32 s%d, s2, 6" % S_SO)
                g("s_add_u32 s%d, s%d, %d" % (S_SO, S_SO, WS_MB3))
                g.bload(82, TT, WS, S_SO, 0, "sc1", n=1, agpr=True)
                n += 1
            g("s_mov_b64 exec, 1")
            g("s_lshl_b32 s%d, s2, 4" % S_SO)
            g("v_mov_b32 v%d, 0" % TT)
            g.bload(83, TT, OUT, S_SO, 0, "sc1", n=1, agpr=True)
            g("s_mov_b64 exec, -1")
            return n + 1
        self.pretouch_fn = pretouch

        g("s_cmp_lg_u32 s%d, 0" % S_W)
        g("s_cbranch_scc1 L_wx_pre")
        g("s_bfe_u32 s%d, s2, 0x20005" % S_SO)
        g("s_lshl_b32 s%d, s%d, 10" % (S_SO, S_SO))
        g.bload(X + 8, V_OFFL, XS, S_SO, 0, "")
        g.bload(X + 12, V_OFFL, GW, None, 0, "")
        g("s_waitcnt vmcnt(%d)" % (NAK1 + 2))
        g("s_branch L_qproj")
        g("L_wx_pre:")
        g("s_waitcnt vmcnt(%d)" % NAK1)
        g("L_qproj:")
        g.pstamp(5)
        wregs = [V_W + 4 * e for e in range(8)]
        for i in range(8):
            pb = V_PERM + 4 * (i % 4)
            g.perm_operand(pb, wregs, i)
            if i > 0:
                pp = V_PERM + 4 * ((i - 1) % 4)
                g("v_mfma_f32_16x16x32_bf16 v[%d:%d], v[%d:%d], v[%d:%d], 0" % (V_ACC + 4 * (i - 1), V_ACC + 4 * (i - 1) + 3, pp, pp + 3, V_POP, V_POP + 3))
        pp = V_PERM + 4 * (7 % 4)
        g("v_mfma_f32_16x16x32_bf16 v[%d:%d], v[%d:%d], v[%d:%d], 0" % (V_ACC + 28, V_ACC + 31, pp, pp + 3, V_POP, V_POP + 3))
        g("v_lshrrev_b32 v%d, 4, v%d" % (V_TE, V_LANE))
        g("v_lshlrev_b32 v%d, 9, v%d" % (V_TE, V_TE))
        g("v_and_b32 v%d, 3, v%d" % (V_TE + 1, V_LANE))
        g("v_lshl_add_u32 v%d, v%d, 7, v%d" % (V_TE, V_TE + 1, V_TE))
        g("s_lshl_b32 s%d, s%d, 11" % (S_T0, S_W))
        g("v_add_u32 v%d, s%d, v%d" % (V_TE, S_T0, V_TE))
        g.exec_set(0xF0000F0000F0000F)
        for i in range(8):
            g("ds_write_b128 v%d, v[%d:%d] offset:%d" % (V_TE, V_ACC + 4 * i, V_ACC + 4 * i + 3, L_QP + i * 16))
        g.exec_set(-1)
        g("s_waitcnt lgkmcnt(0)")
        g("s_add_u32 s%d, s%d, 0x%x" % (S_T, S_T, EPOCH_C))
        g("s_barrier")
        g.stamp(2)
        g.pstamp(6)
        g("s_cmp_gt_u32 s%d, 1" % S_W)
        g("s_cbranch_scc1 L_prefetch")
        g("v_and_b32 v%d, 31, v0" % V_TE)
        g("v_lshrrev_b32 v%d, 5, v0" % (V_TE + 1))
        g("v_and_b32 v%d, 7, v%d" % (V_TE + 2, V_TE))
        g("v_lshrrev_b32 v%d, 3, v%d" % (V_TE + 3, V_TE))
        g("v_lshl_add_u32 v%d, v%d, 2, v%d" % (V_TE + 2, V_TE + 2, V_TE + 3))
        g("v_lshlrev_b32 v%d, 2, v%d" % (V_TE + 2, V_TE + 2))
        g("v_lshl_add_u32 v%d, v%d, 7, v%d" % (V_TE + 2, V_TE + 1, V_TE + 2))
        for p in range(16):
            g("ds_read_b32 v%d, v%d offset:%d" % (V_D + p, V_TE + 2, L_QP + p * 512))
        g("v_lshrrev_b32 v%d, 2, v%d" % (V_TE, V_TE))
        g("v_lshlrev_b32 v%d, 4, v%d" % (V_TE, V_TE))
        g("v_lshl_add_u32 v%d, v%d, 14, v%d" % (V_TE, V_TE + 1, V_TE))
        g("s_lshl_b32 s%d, s%d, 16" % (S_T0, S_BR))
        g("s_lshl_b32 s%d, s%d, 7" % (S_T1, S_CB))
        g("s_add_u32 s%d, s%d, s%d" % (S_T0, S_T0, S_T1))
        g("s_add_u32 s%d, s%d, %d" % (S_SO, S_T0, WS_Q))
        g("v_mov_b32 v%d, s%d" % (V_TE + 3, S_T))
        g("s_waitcnt lgkmcnt(0)")
        for st in (1, 2, 4, 8):
            for p in range(0, 16, 2 * st):
                g("v_add_f32 v%d, v%d, v%d" % (V_D + p, V_D + p, V_D + p + st))
        g("v_cvt_pk_bf16_f32 v%d, v%d, v%d" % (V_D, V_D, V_D))
        g("s_mov_b32 s%d, 0x07060100" % S_T0)
        g("v_perm_b32 v%d, v%d, v%d, s%d" % (V_PERM, V_D, V_TE + 3, S_T0))
        for k in (1, 2, 3):
            g("v_mov_b32_dpp v%d, v%d quad_perm:[%d,%d,%d,%d] row_mask:0xf bank_mask:0xf" % (V_PERM + k, V_PERM, k, k, k, k))
        g.exec_set(0x1111111111111111)
        g.bstore(V_PERM, V_TE, WS, S_SO, 0, "sc1")
        g.exec_set(-1)
        g.pstamp(7)
        g("s_cmp_lg_u32 s%d, 0" % S_W)
        g("s_cbranch_scc1 L_prefetch")
        g("s_waitcnt vmcnt(1)")
        xs, gs = X + 8, X + 12
        accg = V_S
        g("v_mov_b32 v%d, 0" % accg)
        for r in range(4):
            g("v_lshlrev_b32 v%d, 16, v%d" % (V_TE, xs + r))
            g("v_and_b32 v%d, s%d, v%d" % (V_TE + 1, S_HI16, xs + r))
            g("v_lshlrev_b32 v%d, 16, v%d" % (V_TE + 2, gs + r))
            g("v_and_b32 v%d, s%d, v%d" % (V_TE + 3, S_HI16, gs + r))
            g("v_mul_f32 v%d, v%d, v%d" % (V_TE, V_TE, V_TE + 2))
            g("v_mul_f32 v%d, v%d, v%d" % (V_TE + 1, V_TE + 1, V_TE + 3))
            g("v_cvt_pk_bf16_f32 v%d, v%d, v%d" % (V_TE, V_TE, V_TE + 1))
            g("v_lshlrev_b32 v%d, 16, v%d" % (V_TE + 1, V_TE))
            g("v_and_b32 v%d, s%d, v%d" % (V_TE, S_HI16, V_TE))
            g("v_add_f32 v%d, v%d, v%d" % (accg, accg, V_TE + 1))
            g("v_add_f32 v%d, v%d, v%d" % (accg, accg, V_TE))
        self.wave_sum_to63([accg])
        g("v_readlane_b32 s%d, v%d, 63" % (S_T0, accg))
        g("v_mov_b32 v%d, s%d" % (V_TE, S_T0))
        g.round_bf16(V_TE, V_TE)
        g("v_mul_f32 v%d, s%d, v%d" % (V_TE, S_L2E, V_TE))
        g("v_sub_f32 v%d, 0, v%d" % (V_TE, V_TE))
        g("v_exp_f32 v%d, v%d" % (V_TE, V_TE))
        g("v_add_f32 v%d, 1.0, v%d" % (V_TE, V_TE))
        g("v_rcp_f32 v%d, v%d" % (V_TE, V_TE))
        g.round_bf16(V_TE, V_TE)
        g("v_sub_f32 v%d, 1.0, v%d" % (V_TE + 1, V_TE))
        g.round_bf16(V_TE + 1, V_TE + 1)
        g("v_readfirstlane_b32 s%d, v%d" % (S_G, V_TE))
        g("v_readfirstlane_b32 s%d, v%d" % (S_OMG, V_TE + 1))
        g("v_and_b32 v%d, 3, v%d" % (V_TE, V_LANE))
        g("v_lshlrev_b32 v%d, 9, v%d" % (V_TE, V_TE))
        g("v_lshrrev_b32 v%d, 4, v%d" % (V_TE + 1, V_LANE))
        g("v_lshl_add_u32 v%d, v%d, 7, v%d" % (V_TE, V_TE + 1, V_TE))
        g("v_bfe_u32 v%d, v%d, 2, 2" % (V_TE + 1, V_LANE))
        g("v_lshl_add_u32 v%d, v%d, 5, v%d" % (V_TE, V_TE + 1, V_TE))
        g("s_lshl_b32 s%d, s%d, 14" % (S_T0, S_B))
        g("s_lshl_b32 s%d, s%d, 11" % (S_T1, S_HKV))
        g("s_add_u32 s%d, s%d, s%d" % (S_T0, S_T0, S_T1))
        g("s_add_u32 s%d, s%d, %d" % (S_T0, S_T0, WS_Q))
        g("s_add_u32 s%d, s%d, 65536" % (S_T1, S_T0))
        def qloads():
            g.bload(V_D, V_TE, WS, S_T0, 0, "sc1")
            g.bload(V_D + 4, V_TE, WS, S_T0, 16, "sc1")
            g.bload(V_D + 8, V_TE, WS, S_T1, 0, "sc1")
            g.bload(V_D + 12, V_TE, WS, S_T1, 16, "sc1")
        g.poll(qloads, [V_D + k for k in range(16)], "0xffff")
        g.pstamp(8)
        for br in range(2):
            for t in range(4):
                g("v_perm_b32 v%d, v%d, v%d, s%d" % (V_PERM + 4 * br + t, V_D + 8 * br + 2 * t + 1, V_D + 8 * br + 2 * t, S_SELH))
        g("ds_write_b128 v%d, v[%d:%d] offset:%d" % (V_OFFL, V_PERM, V_PERM + 3, L_QB))
        g("ds_write_b128 v%d, v[%d:%d] offset:%d" % (V_OFFL, V_PERM + 4, V_PERM + 7, L_QB + 1024))
        g("s_waitcnt lgkmcnt(0)")
        g("s_barrier")
        late_loads()
        g("s_branch L_aphase")
        g("L_prefetch:")
        late_loads(self.pace)
        g("s_barrier")
        g("L_aphase:")
        g.stamp(3)
        g.pstamp(9)
        g("ds_read_b128 v[%d:%d], v%d offset:%d" % (V_QA, V_QA + 3, V_OFFL, L_QB))
        g("ds_read_b128 v[%d:%d], v%d offset:%d" % (V_QB, V_QB + 3, V_OFFL, L_QB + 1024))
        for k in range(32):
            g("v_mov_b32 v%d, 0" % (V_ACC + k))
        PT = 0
        g("s_waitcnt vmcnt(%d) lgkmcnt(0)" % (32 + PT))
        SA = [V_X + 8 + G_ for G_ in range(4)]
        dbuf = [V_W, V_W + 16]
        g.qk_group([A_AK + 4 * j for j in range(0, 4)], V_QA, dbuf[0], None)
        for G_ in range(4):
            if G_ < 3:
                g.qk_group([A_AK + 16 * (G_ + 1) + 4 * j for j in range(4)], V_QA, dbuf[(G_ + 1) % 2], None)
            g.qk_extract(dbuf[G_ % 2], SA[G_])
        g("v_max3_f32 v%d, v%d, v%d, v%d" % (V_M, SA[0], SA[1], SA[2]))
        g("v_max_f32 v%d, v%d, v%d" % (V_M, V_M, SA[3]))
        g.head_allreduce(V_M, "v_max_f32", V_TE)
        g("v_mul_f32 v%d, s%d, v%d" % (V_ML, S_L2E, V_M))
        for G_ in range(4):
            g("v_fma_f32 v%d, v%d, s%d, -v%d" % (SA[G_], SA[G_], S_L2E, V_ML))
        for G_ in range(4):
            g("v_exp_f32 v%d, v%d" % (SA[G_], SA[G_]))
        g("v_add_f32 v%d, v%d, v%d" % (V_L, SA[0], SA[1]))
        g("v_add_f32 v%d, v%d, v%d" % (V_TE, SA[2], SA[3]))
        g("v_add_f32 v%d, v%d, v%d" % (V_L, V_L, V_TE))
        for T_ in range(2):
            g.p_operand(SA[2 * T_], V_POP)
            g.p_operand(SA[2 * T_ + 1], V_POP + 2)
            g("s_waitcnt vmcnt(%d)" % ((24 if T_ == 0 else 16) + PT))
            vregs = [V_AV + 32 * T_ + 4 * j for j in range(8)]
            for i in range(9):
                if i < 8:
                    g.perm_operand(V_PERM + 4 * (i % 4), vregs, i)
                if i > 0:
                    pp = V_PERM + 4 * ((i - 1) % 4)
                    ac = V_ACC + 4 * (i - 1)
                    g("v_mfma_f32_16x16x32_bf16 v[%d:%d], v[%d:%d], v[%d:%d], v[%d:%d]" % (ac, ac + 3, pp, pp + 3, V_POP, V_POP + 3, ac, ac + 3))
        g.write_partial(0)
        g.stamp(4)
        g.pstamp(10)
        for k in range(32):
            g("v_mov_b32 v%d, 0" % (V_ACC + k))
        g("v_mov_b32 v%d, 0xff7fffff" % V_M)
        g("v_mov_b32 v%d, 0xff7fffff" % V_ML)
        g("v_mov_b32 v%d, 0" % V_L)
        g("s_add_u32 s%d, s%d, 32" % (S_T0, S_SLOT))
        g("v_mov_b32 v%d, s%d" % (V_TK, S_T0))
        g("s_lshl_b32 s%d, s%d, 8" % (S_T0, S_PAIR))
        g("s_add_u32 s%d, s%d, %d" % (S_T0, S_T0, WS_CNT))
        g("v_mov_b32 v%d, s%d" % (V_CNT, S_T0))
        if self.pretouch:
            Lp = g.label("L_nopt")
            if self.pretouch == 1:
                g("s_cmp_lg_u32 s%d, 0" % S_W)
                g("s_cbranch_scc1 %s" % Lp)
            self.pretouch_fn()
            g("%s:" % Lp)
        g("L_loop:")
        g("s_waitcnt vmcnt(4)")
        g.qk_group([A_BK + 4 * j for j in range(4)], V_QB, V_D, None)
        g("v_readfirstlane_b32 s%d, v%d" % (S_NEXT, V_TK))
        g("s_mov_b32 s%d, 1" % S_LAST)
        g("s_cmp_ge_u32 s%d, 512" % S_NEXT)
        g("s_cbranch_scc1 L_nonext")
        g("s_mov_b32 s%d, 0" % S_LAST)
        g("s_lshl_b32 s%d, s%d, 12" % (S_KO, S_NEXT))
        g("s_add_u32 s%d, s%d, s%d" % (S_KO, S_KO, S_PB))
        for j in range(4):
            g.bload(A_BK + 4 * j, V_OFFK, KB, S_KO, j * 1024, nt, agpr=True)
        if self.dyn and self.nstat == 2:
            g.exec_set(1) if False else g("s_mov_b64 exec, 1")
            g("global_atomic_add v%d, v%d, v%d, s[90:91] sc0 sc1" % (V_TK, V_CNT, V_ONE))
            g("s_mov_b64 exec, -1")
        else:
            Ls = g.label("L_stat"); Lj = g.label("L_statj")
            g("s_add_u32 s99, s99, 1")
            g("s_cmp_lt_u32 s99, %d" % (self.nstat if self.dyn else 1000))
            g("s_cbranch_scc1 %s" % Ls)
            g("s_mov_b64 exec, 1")
            g("global_atomic_add v%d, v%d, v%d, s[90:91] sc0 sc1" % (V_TK, V_CNT, V_ONE))
            g("s_mov_b64 exec, -1")
            g("s_waitcnt_placeholder")
            g("s_branch %s" % Lj)
            g("%s:" % Ls)
            g("v_add_u32 v%d, 32, v%d" % (V_TK, V_TK))
            g("%s:" % Lj)
        g("L_nonext:")
        g.qk_extract(V_D, V_S)
        g("v_cmp_gt_f32 vcc, v%d, v%d" % (V_S, V_M))
        g("s_cbranch_vccnz L_slow")
        g("L_fast:")
        g("v_fma_f32 v%d, v%d, s%d, -v%d" % (V_P, V_S, S_L2E, V_ML))
        g("v_exp_f32 v%d, v%d" % (V_P, V_P))
        g("v_add_f32 v%d, v%d, v%d" % (V_L, V_L, V_P))
        g.p_operand(V_P, V_POP)
        g("s_cmp_eq_u32 s%d, 0" % S_LAST)
        g("s_cbranch_scc1 L_wv5")
        g("s_waitcnt vmcnt(0)")
        g("s_branch L_pv")
        g("L_wv5:")
        g("s_waitcnt vmcnt(%d)" % 5)
        g("L_pv:")
        vregs = [V_BV + 4 * j for j in range(4)]
        for i in range(8):
            g.perm_operand(V_PERM + 2 * i, vregs, i)
        g("s_cmp_lg_u32 s%d, 0" % S_LAST)
        g("s_cbranch_scc1 L_pvm")
        for j in range(4):
            g.bload(V_BV + 4 * j, V_OFFL, VB, S_KO, j * 1024, nt)
        g("L_pvm:")
        for i in range(8):
            ac = V_ACC + 4 * i
            g("v_mfma_f32_16x16x16_bf16 v[%d:%d], v[%d:%d], v[%d:%d], v[%d:%d]" % (ac, ac + 3, V_PERM + 2 * i, V_PERM + 2 * i + 1, V_POP, V_POP + 1, ac, ac + 3))
        g("s_cmp_eq_u32 s%d, 0" % S_LAST)
        g("s_cbranch_scc1 L_loop")
        g("s_branch L_bdone")
        g("L_slow:")
        g("v_mov_b32 v%d, v%d" % (V_P, V_S))
        g.head_allreduce(V_P, "v_max_f32", V_TE)
        g("v_max_f32 v%d, v%d, v%d" % (V_P, V_P, V_M))
        g("v_sub_f32 v%d, v%d, v%d" % (V_TE, V_M, V_P))
        g("v_mul_f32 v%d, s%d, v%d" % (V_TE, S_L2E, V_TE))
        g("v_exp_f32 v%d, v%d" % (V_TE, V_TE))
        g("v_mov_b32 v%d, v%d" % (V_M, V_P))
        g("v_mul_f32 v%d, s%d, v%d" % (V_ML, S_L2E, V_P))
        g("v_mul_f32 v%d, v%d, v%d" % (V_L, V_L, V_TE))
        for k in range(32):
            g("v_mul_f32 v%d, v%d, v%d" % (V_ACC + k, V_ACC + k, V_TE))
        g("s_branch L_fast")
        g("L_bdone:")
        g.stamp(5)
        g.write_partial(1)
        g("s_waitcnt lgkmcnt(0)")
        g("s_barrier")
        T0, T1, T2, T3 = V_TE, V_TE + 1, V_TE + 2, V_TE + 3
        g("v_lshrrev_b32 v%d, 7, v0" % T0)
        g("v_bfe_u32 v%d, v0, 5, 2" % T1)
        g("v_and_b32 v%d, 7, v0" % T2)
        g("v_bfe_u32 v%d, v0, 3, 2" % T3)
        g("v_lshl_add_u32 v%d, v%d, 2, v%d" % (V_X, T0, T1))
        g("v_lshlrev_b32 v%d, 5, v%d" % (V_X + 1, V_X))
        g("ds_read_b128 v[%d:%d], v%d offset:%d" % (V_D, V_D + 3, V_X + 1, L_ML))
        g("ds_read_b128 v[%d:%d], v%d offset:%d" % (V_D + 4, V_D + 7, V_X + 1, L_ML + 16))
        g("v_mul_u32_u24 v%d, %d, v%d" % (V_X + 2, 16 * HS, T0))
        g("v_mul_u32_u24 v%d, %d, v%d" % (V_X + 3, HS, T1))
        g("v_add_u32 v%d, v%d, v%d" % (V_X + 2, V_X + 2, V_X + 3))
        g("v_lshl_add_u32 v%d, v%d, 4, v%d" % (V_X + 2, T2, V_X + 2))
        g("v_lshl_add_u32 v%d, v%d, 7, v%d" % (V_X + 2, T3, V_X + 2))
        for w in range(4):
            g("ds_read_b128 v[%d:%d], v%d offset:%d" % (V_W + 4 * w, V_W + 4 * w + 3, V_X + 2, L_OP + w * 4 * HS))
        g("v_lshlrev_b32 v%d, 7, v%d" % (V_X + 4, T0))
        g("v_lshl_add_u32 v%d, v%d, 2, v%d" % (V_X + 4, T1, V_X + 4))
        g("v_add_u32 v%d, v%d, v%d" % (V_X + 4, V_X + 4, T3))
        g("s_lshl_b32 s%d, s%d, 4" % (S_T0, S_HKV))
        g("v_add_u32 v%d, s%d, v%d" % (V_X + 4, S_T0, V_X + 4))
        g("s_lshl_b32 s%d, s%d, 3" % (S_T1, S_B))
        g("s_add_u32 s%d, s%d, s%d" % (S_T1, S_T1, S_C))
        if self.skew:
            g("v_add_u32 v%d, s%d, v%d" % (V_X + 5, S_T1, V_X + 4))
            g("v_and_b32 v%d, 31, v%d" % (V_X + 5, V_X + 5))
        else:
            g("v_mov_b32 v%d, s%d" % (V_X + 5, S_T1))
        g("v_lshlrev_b32 v%d, 9, v%d" % (V_X + 3, V_X + 4))
        g("v_lshl_add_u32 v%d, v%d, 4, v%d" % (V_X + 3, V_X + 5, V_X + 3))
        g("v_lshlrev_b32 v%d, 12, v%d" % (V_X + 4, V_X + 4))
        g("v_lshl_add_u32 v%d, v%d, 7, v%d" % (V_X + 4, V_X + 5, V_X + 4))
        g("v_lshl_add_u32 v%d, v%d, 4, v%d" % (V_X + 4, T2, V_X + 4))
        g("s_mov_b32 s%d, %d" % (S_SO, WS_MB1))
        g("s_mov_b32 s%d, %d" % (S_T2, WS_ML))
        g("v_mov_b32 v%d, s%d" % (V_X + 5, S_T))
        g("s_waitcnt lgkmcnt(4)")
        M_, A0 = V_X + 6, V_X + 8
        g("v_max3_f32 v%d, v%d, v%d, v%d" % (M_, V_D, V_D + 1, V_D + 2))
        g("v_max_f32 v%d, v%d, v%d" % (M_, M_, V_D + 3))
        for w in range(4):
            g("v_sub_f32 v%d, v%d, v%d" % (A0 + w, V_D + w, M_))
        for w in range(4):
            g("v_mul_f32 v%d, s%d, v%d" % (A0 + w, S_L2E, A0 + w))
        for w in range(4):
            g("v_exp_f32 v%d, v%d" % (A0 + w, A0 + w))
        Lr = V_X + 7
        g("v_mul_f32 v%d, v%d, v%d" % (Lr, A0, V_D + 4))
        for w in range(1, 4):
            g("v_fma_f32 v%d, v%d, v%d, v%d" % (Lr, A0 + w, V_D + 4 + w, Lr))
        g("s_waitcnt lgkmcnt(0)")
        O_ = V_PERM
        for r in range(4):
            g("v_mul_f32 v%d, v%d, v%d" % (O_ + r, A0, V_W + r))
        for w in range(1, 4):
            for r in range(4):
                g("v_fma_f32 v%d, v%d, v%d, v%d" % (O_ + r, A0 + w, V_W + 4 * w + r, O_ + r))
        for r in range(4):
            g("v_bfi_b32 v%d, s%d, v%d, v%d" % (O_ + r, S_TAGM, V_X + 5, O_ + r))
        g.bstore(O_, V_X + 4, WS, S_SO, 0, "sc1")
        g("v_bfi_b32 v%d, s%d, v%d, v%d" % (O_ + 4, S_TAGM, V_X + 5, M_))
        g("v_bfi_b32 v%d, s%d, v%d, v%d" % (O_ + 5, S_TAGM, V_X + 5, Lr))
        g("v_and_b32 v%d, s%d, v%d" % (O_ + 6, S_TAGM, V_X + 5))
        g("v_and_b32 v%d, s%d, v%d" % (O_ + 7, S_TAGM, V_X + 5))
        g.exec_set(0x0101010101010101)
        g.bstore(O_ + 4, V_X + 3, WS, S_T2, 0, "sc1")
        g.exec_set(-1)
        g.stamp(6)
        woregs = [V_WO + 4 * e for e in range(8)]
        for i in range(8):
            g.perm_operand(V_AV + 4 * i, woregs, i)
        g("v_and_b32 v%d, 7, v%d" % (T0, V_LANE))
        g("s_lshl_b32 s%d, s%d, 3" % (S_T1, S_W))
        if self.skew:
            g("s_add_u32 s%d, s%d, s%d" % (S_T1, S_T1, S_ROLE))
        g("v_add_u32 v%d, s%d, v%d" % (T0, S_T1, T0))
        g("v_and_b32 v%d, 31, v%d" % (T0, T0))
        g("v_lshlrev_b32 v%d, 4, v%d" % (T1, T0))
        g("v_lshlrev_b32 v%d, 7, v%d" % (T0, T0))
        g("v_lshrrev_b32 v%d, 3, v%d" % (T2, V_LANE))
        g("v_lshl_add_u32 v%d, v%d, 4, v%d" % (T0, T2, T0))
        g("s_lshl_b32 s%d, s%d, 12" % (S_T0, S_ROLE))
        g("s_add_u32 s%d, s%d, %d" % (S_SO, S_T0, WS_MB1))
        g("s_lshl_b32 s%d, s%d, 9" % (S_T0, S_ROLE))
        g("s_add_u32 s%d, s%d, %d" % (S_T2, S_T0, WS_ML))
        def oloads():
            g.bload(V_D, T0, WS, S_SO, 0, "sc1")
            g.bload(V_D + 4, T1, WS, S_T2, 0, "sc1")
        g.poll(oloads, [V_D + k for k in range(8)], "s%d" % S_TAGM)
        g.stamp(7)
        m_, l_ = V_D + 4, V_D + 5
        g("v_and_b32 v%d, s%d, v%d" % (m_, S_HI16, m_))
        Mx = V_X
        def red8(op, regs):
            for ctl in ("quad_perm:[1,0,3,2]", "quad_perm:[2,3,0,1]", "row_half_mirror"):
                for r in regs:
                    g("%s_dpp v%d, v%d, v%d %s row_mask:0xf bank_mask:0xf" % (op, r, r, r, ctl))
        g("v_mov_b32 v%d, v%d" % (Mx, m_))
        red8("v_max_f32", [Mx])
        g("v_sub_f32 v%d, v%d, v%d" % (Mx, m_, Mx))
        g("v_mul_f32 v%d, s%d, v%d" % (Mx, S_L2E, Mx))
        g("v_exp_f32 v%d, v%d" % (Mx, Mx))
        for r in (V_D, V_D + 1, V_D + 2, V_D + 3, l_):
            g("v_mul_f32 v%d, v%d, v%d" % (r, r, Mx))
        red8("v_add_f32", [V_D, V_D + 1, V_D + 2, V_D + 3, l_])
        g("v_rcp_f32 v%d, v%d" % (l_, l_))
        for r in range(4):
            g("v_mul_f32 v%d, v%d, v%d" % (V_D + r, V_D + r, l_))
        g("v_cvt_pk_bf16_f32 v%d, v%d, v%d" % (V_PERM, V_D, V_D + 1))
        g("v_cvt_pk_bf16_f32 v%d, v%d, v%d" % (V_PERM + 1, V_D + 2, V_D + 3))
        g("v_lshlrev_b32 v%d, 3, v%d" % (T2, T2))
        g("s_lshl_b32 s%d, s%d, 6" % (S_T0, S_W))
        g("v_add_u32 v%d, s%d, v%d" % (T2, S_T0, T2))
        g.exec_set(0x0101010101010101)
        g("ds_write_b64 v%d, v[%d:%d] offset:%d" % (T2, V_PERM, V_PERM + 1, L_PB))
        g.exec_set(-1)
        g("v_bfe_u32 v%d, v%d, 2, 2" % (T3, V_LANE))
        g("v_lshlrev_b32 v%d, 6, v%d" % (T0, T3))
        g("v_lshrrev_b32 v%d, 4, v%d" % (T1, V_LANE))
        g("v_lshl_add_u32 v%d, v%d, 4, v%d" % (T0, T1, T0))
        g("s_waitcnt lgkmcnt(0)")
        g("s_barrier")
        g("ds_read_b128 v[%d:%d], v%d offset:%d" % (V_POP, V_POP + 3, T0, L_PB))
        Y0, Y1 = V_X + 1, V_X + 2
        g("v_lshlrev_b32 v%d, 5, v%d" % (Y0, T3))
        g("v_lshl_add_u32 v%d, v%d, 1, v%d" % (Y0, T1, Y0))
        g("s_lshl_b32 s%d, s%d, 3" % (S_T0, S_W))
        g("s_add_u32 s%d, s%d, s%d" % (S_T1, S_T0, S_ROLE))
        g("v_and_b32 v%d, 3, v%d" % (T2, V_LANE))
        g("v_lshlrev_b32 v%d, 4, v%d" % (T2, T2))
        for hb, Yr in ((0, Y0), (1, Y1)):
            if hb == 1:
                g("v_add_u32 v%d, 1, v%d" % (V_X + 3, V_X + 4))
            else:
                g("v_mov_b32 v%d, v%d" % (V_X + 4, Y0))
                g("v_mov_b32 v%d, v%d" % (V_X + 3, Y0))
            if self.skew:
                g("v_add_u32 v%d, s%d, v%d" % (Yr, S_T1, V_X + 3))
            else:
                g("v_mov_b32 v%d, s%d" % (Yr, S_ROLE))
            g("v_and_b32 v%d, 127, v%d" % (Yr, Yr))
            g("v_lshl_add_u32 v%d, v%d, 6, v%d" % (Yr, Yr, T2))
            g("v_lshl_add_u32 v%d, v%d, 14, v%d" % (Yr, V_X + 3, Yr))
        g("s_lshl_b32 s%d, s%d, 17" % (S_T0, S_W))
        g("s_and_b32 s%d, s%d, 128" % (S_T1, S_ROLE))
        g("s_lshl_b32 s%d, s%d, 6" % (S_T1, S_T1))
        g("s_add_u32 s%d, s%d, s%d" % (S_T0, S_T0, S_T1))
        g("s_add_u32 s%d, s%d, %d" % (S_SO, S_T0, WS_MB3))
        g("s_mov_b32 s84, 0xaaaaaaaa")
        g("s_mov_b32 s85, 0xaaaaaaaa")
        g("s_mov_b32 s86, 0xcccccccc")
        g("s_mov_b32 s87, 0xcccccccc")
        g("s_waitcnt lgkmcnt(0)")
        for i in range(8):
            g("v_mfma_f32_16x16x32_bf16 v[%d:%d], v[%d:%d], v[%d:%d], 0" % (V_ACC + 4 * i, V_ACC + 4 * i + 3, V_AV + 4 * i, V_AV + 4 * i + 3, V_POP, V_POP + 3))
        Z = V_D
        TA, TB = V_W, V_W + 8
        for hb in range(2):
            for k in range(4):
                g("v_cndmask_b32 v%d, v%d, v%d, s[84:85]" % (TA + 4 * hb + k, V_ACC + 4 * k + 2 * hb, V_ACC + 4 * (4 + k) + 2 * hb))
                g("v_cndmask_b32 v%d, v%d, v%d, s[84:85]" % (TB + 4 * hb + k, V_ACC + 4 * k + 2 * hb + 1, V_ACC + 4 * (4 + k) + 2 * hb + 1))
        for hb in range(2):
            for k in range(4):
                g("v_cndmask_b32 v%d, v%d, v%d, s[86:87]" % (Z + 4 * hb + k, TA + 4 * hb + k, TB + 4 * hb + k))
            for k in range(4):
                g("v_bfi_b32 v%d, s%d, v%d, v%d" % (Z + 4 * hb + k, S_TAGM, V_X + 5, Z + 4 * hb + k))
            g.bstore(Z + 4 * hb, Y0 if hb == 0 else Y1, WS, S_SO, 0, "sc1")
        g.stamp(8)
        g.stamp(9)
        g("s_cmp_ge_u32 s2, 128")
        g("s_cbranch_scc1 L_fin")
        g("s_lshl_b32 s%d, s2, 14" % S_T0)
        g("s_lshl_b32 s%d, s%d, 12" % (S_T1, S_W))
        g("s_add_u32 s%d, s%d, s%d" % (S_T0, S_T0, S_T1))
        g("s_add_u32 s%d, s%d, %d" % (S_SO, S_T0, WS_MB3))
        F = V_W
        def yloads():
            for u in range(4):
                g.bload(F + 4 * u, V_OFFL, WS, S_SO, u * 1024, "sc1")
        g.poll(yloads, [F + k for k in range(16)], "s%d" % S_TAGM)
        g.stamp(9)
        for k in range(4):
            g("v_add_f32 v%d, v%d, v%d" % (F + k, F + k, F + 4 + k))
            g("v_add_f32 v%d, v%d, v%d" % (F + 8 + k, F + 8 + k, F + 12 + k))
        for k in range(4):
            g("v_add_f32 v%d, v%d, v%d" % (F + k, F + k, F + 8 + k))
        for ctl in ("row_ror:4", "row_ror:8"):
            for k in range(4):
                g("v_add_f32_dpp v%d, v%d, v%d %s row_mask:0xf bank_mask:0xf" % (F + k, F + k, F + k, ctl))
        g("v_lshrrev_b32 v%d, 4, v%d" % (T1, V_LANE))
        g("v_lshlrev_b32 v%d, 6, v%d" % (T1, T1))
        g("v_and_b32 v%d, 3, v%d" % (T0, V_LANE))
        g("v_lshl_add_u32 v%d, v%d, 4, v%d" % (T1, T0, T1))
        g("s_lshl_b32 s%d, s%d, 8" % (S_T0, S_W))
        g("v_add_u32 v%d, s%d, v%d" % (T1, S_T0, T1))
        g.exec_set(0x000F000F000F000F)
        g("ds_write_b128 v%d, v[%d:%d] offset:%d" % (T1, F, F + 3, L_FR))
        g.exec_set(-1)
        g("s_waitcnt lgkmcnt(0)")
        g("s_barrier")
        g("s_cmp_lg_u32 s%d, 0" % S_W)
        g("s_cbranch_scc1 L_fin")
        g("v_and_b32 v%d, 15, v%d" % (T0, V_LANE))
        g("v_lshlrev_b32 v%d, 2, v%d" % (T1, T0))
        for p in range(16):
            g("ds_read_b32 v%d, v%d offset:%d" % (V_D + p, T1, L_FR + 64 * p))
        g("s_lshl_b32 s%d, s2, 5" % S_SO)
        g("v_lshlrev_b32 v%d, 1, v%d" % (T2, T0))
        g("s_waitcnt lgkmcnt(0)")
        for st in (1, 2, 4):
            for p in range(0, 16, 2 * st):
                g("v_add_f32 v%d, v%d, v%d" % (V_D + p, V_D + p, V_D + p + st))
        Av, Bv = V_D, V_D + 8
        g.round_bf16(Av, Av)
        g.round_bf16(Bv, Bv)
        g("v_mul_f32 v%d, s%d, v%d" % (Av, S_G, Av))
        g("v_mul_f32 v%d, s%d, v%d" % (Bv, S_OMG, Bv))
        g.round_bf16(Av, Av)
        g.round_bf16(Bv, Bv)
        g("v_add_f32 v%d, v%d, v%d" % (Av, Av, Bv))
        g("v_cvt_pk_bf16_f32 v%d, v%d, v%d" % (Av, Av, Av))
        g.exec_set(0xFFFF)
        g("buffer_store_short v%d, v%d, s[%d:%d], s%d offen sc1" % (Av, T2, OUT, OUT + 3, S_SO))
        g.exec_set(-1)
        g("s_cmp_lg_u32 s2, 0")
        g("s_cbranch_scc1 L_fin")
        g("v_mov_b32 v%d, 0" % T0)
        g("v_mov_b32 v%d, s%d" % (T1, S_T))
        g.exec_set(1)
        g.bstore(T1, T0, WS, None, WS_EPOCH, "sc1", n=1)
        g.exec_set(-1)
        g("L_fin:")
        if g.stamps:
            g.stamp(10)
            g("s_waitcnt lgkmcnt(0)")
            g("s_lshl_b32 s%d, s2, 2" % S_T0)
            g("s_add_u32 s%d, s%d, s%d" % (S_T0, S_T0, S_W))
            g("s_mul_i32 s%d, s%d, %d" % (S_T0, S_T0, 8 * NSTAMP))
            g("s_add_u32 s%d, s%d, 0x%x" % (S_SO, S_T0, WS_STAMP))
            g("v_mov_b32 v%d, 0" % T0)
            g.exec_set(1)
            for k in range(NSTAMP):
                r = stamp_reg(k)
                g("v_mov_b32 v%d, s%d" % (V_D, r))
                g("v_mov_b32 v%d, s%d" % (V_D + 1, r + 1))
                g.bstore(V_D, T0, WS, S_SO, 8 * k, "", n=2)
                g("s_nop 1")
            g.exec_set(-1)
        g("L_end:")
        g("s_endpgm")
        self.body_end = len(g.a.lines)
        g('.section .rodata,"a"')
        g(".p2align 6")
        kernel_desc(g.a, K, 256 + NAGPR, 102, 256)
        return self.finish()

    def wave_sum_to63(self, regs):
        g = self
        for ctl in ("quad_perm:[1,0,3,2] row_mask:0xf", "quad_perm:[2,3,0,1] row_mask:0xf", "row_half_mirror row_mask:0xf",
                    "row_mirror row_mask:0xf", "row_bcast:15 row_mask:0xa", "row_bcast:31 row_mask:0xc"):
            for r in regs:
                g("v_add_f32_dpp v%d, v%d, v%d %s bank_mask:0xf" % (r, r, r, ctl))

    def finish(self):
        lines = self.a.lines
        body = lines[self.body_start:self.body_end]
        fixed, n = hazard.fix_all(body)
        out = lines[:self.body_start] + fixed + lines[self.body_end:]
        self.nops = n
        return "\n".join(out) + "\n"

NSTAMP = 11
def stamp_reg(k):
    return 100 if k == 0 else S_STAMP + 2 * (k - 1)

if __name__ == "__main__":
    ap = argparse.ArgumentParser()
    ap.add_argument("-o", required=True)
    ap.add_argument("--stamps", action="store_true")
    ap.add_argument("--nt", default="nt")
    ap.add_argument("--pace", type=int, default=8)
    ap.add_argument("--nak1", type=int, default=8)
    ap.add_argument("--noskew", action="store_true")
    ap.add_argument("--sleep", type=int, default=0)
    ap.add_argument("--pretouch", type=int, default=0)
    ap.add_argument("--prostamps", action="store_true")
    x = ap.parse_args()
    g = G(stamps=x.stamps, ntf=x.nt, pace=x.pace, nak1=x.nak1, skew=not x.noskew, sleep=x.sleep, pretouch=x.pretouch, prostamps=x.prostamps)
    t = g.build()
    open(x.o, "w").write(t)
    print("lines", t.count("\n"), "nop wait states inserted", g.nops)
```
